```python
import torch

def _softmax(x, axis=-1):
    return torch.softmax(x, dim=axis)
def _gelu(x):
    return torch.nn.functional.gelu(x, approximate="tanh")
def _silu(x):
    return torch.nn.functional.silu(x)
def _sigmoid(x):
    return torch.sigmoid(x)
def _layernorm(x, axis=-1, eps=1e-5):
    m = x.mean(dim=axis, keepdim=True)
    v = x.var(dim=axis, keepdim=True, unbiased=False)
    return (x - m) / torch.sqrt(v + eps)
def _scatter_add(tgt, idx, src, axis=0):
    return tgt.clone().index_add_(axis, idx, src)
def _segment_sum(src, seg, n):
    out = torch.zeros((n,) + src.shape[1:], dtype=src.dtype)
    return out.index_add_(0, seg, src)
def _pad(x, pw):
    flat = tuple(v for pair in reversed(pw) for v in pair)
    return torch.nn.functional.pad(x, flat)

kernel_name = 'recurrent_scan__linear_kernel_hedgehog__dense_activation_silu__prompt'

def setup_inputs():

    _w = (lambda a: (lambda t: t.to(torch.bfloat16) if t.is_floating_point() else t)(torch.as_tensor(a)))
    def _A_setup():
        B, S, D, H = 1, 2048, 576, 32
        Dh = D // H
        return {
            "x": _w((lambda *s: torch.randn(*s, dtype=torch.bfloat16) * 0.05)(B, S, D)),
            "wqkv": _w((lambda *s: torch.randn(*s, dtype=torch.bfloat16) * 0.4)(D, 3 * D)),
            "w_phi": _w((lambda *s: torch.randn(*s, dtype=torch.bfloat16) * 0.4)(H, Dh, Dh) * (Dh ** -0.5)),
            "wo": _w((lambda *s: torch.randn(*s, dtype=torch.bfloat16) * 0.2)(D, D)),
        }
    _A_in = _A_setup()

    def _B_setup():
        B, S, D, F = 1, 2048, 576, 4608
        return {
            "x": _w((lambda *s: torch.randn(*s, dtype=torch.bfloat16) * 0.05)(B, S, D)),
            "w1": _w((lambda *s: torch.randn(*s, dtype=torch.bfloat16) * 0.4)(D, F) * (D ** -0.5)),
            "w2": _w((lambda *s: torch.randn(*s, dtype=torch.bfloat16) * 0.1)(F, D) * (F ** -0.5)),
        }
    _B_in = _B_setup()

    return {
        "A_x": _A_in["x"],
        "A_wqkv": _A_in["wqkv"],
        "A_w_phi": _A_in["w_phi"],
        "A_wo": _A_in["wo"],
        "B_x": _B_in["x"],
        "B_w1": _B_in["w1"],
        "B_w2": _B_in["w2"],
    }

def reference(A_x, A_wqkv, A_w_phi, A_wo, B_x, B_w1, B_w2):
    def _A_ref(x, wqkv, w_phi, wo):
        B, S, D = x.shape
        H = 32; Dh = D // H
        qkv = (lambda x, *d: x.permute(*d))((x @ wqkv).reshape(B, S, 3, H, Dh), 2, 0, 3, 1, 4)
        q, k, v = qkv[0], qkv[1], qkv[2]
        pq = torch.einsum("bhsd,hdf->bhsf", q, w_phi)
        pk = torch.einsum("bhsd,hdf->bhsf", k, w_phi)
        phi_q = torch.concatenate([_softmax(pq, axis=-1), _softmax(-pq, axis=-1)], axis=-1)
        phi_k = torch.concatenate([_softmax(pk, axis=-1), _softmax(-pk, axis=-1)], axis=-1)
        kv = torch.einsum("bhsf,bhsd->bhfd", phi_k, v)
        z  = torch.einsum("bhsf->bhf", phi_k)
        num = torch.einsum("bhqf,bhfd->bhqd", phi_q, kv)
        den = torch.einsum("bhqf,bhf->bhq", phi_q, z)[..., None] + 1e-6
        o = num / den
        return (lambda x, *d: x.permute(*d))(o, 0, 2, 1, 3).reshape(B, S, D) @ wo

    def _B_ref(x, w1, w2):
        h = torch.einsum("bsd,df->bsf", x, w1)
        h = _silu(h)
        out = torch.einsum("bsf,fd->bsd", h, w2)
        return out

    x = A_x
    xn = _layernorm(x, axis=-1)
    s = _A_ref(xn, A_wqkv, A_w_phi, A_wo)
    g = _silu(_B_ref(xn, B_w1, B_w2))
    return x + s * g
```

```python
import re

_REG = re.compile(r"^(-|abs\()?\|?([vsa])(?:(\d+)|\[(\d+):(\d+)\])\)?\|?$")

def regs_of(tok):
    tok = tok.strip()
    if tok in ("vcc",): return {("s", 106), ("s", 107)}
    if tok in ("exec",): return {("s", 126), ("s", 127)}
    if tok == "m0": return {("s", 124)}
    m = _REG.match(tok)
    if not m: return set()
    f = m.group(2)
    if m.group(3) is not None: return {(f, int(m.group(3)))}
    return {(f, i) for i in range(int(m.group(4)), int(m.group(5)) + 1)}

TRANS = ("v_exp_f32", "v_log_f32", "v_rcp_f32", "v_rsq_f32", "v_sqrt_f32", "v_sin_f32", "v_cos_f32")

class Ins:
    __slots__ = ("text", "mn", "kind", "defs", "uses", "srcc", "ab", "states", "wide", "dpp", "data")

def split_ops(s):
    out, depth, cur = [], 0, ""
    for ch in s:
        if ch == "[": depth += 1
        if ch == "]": depth -= 1
        if ch == "," and depth == 0:
            out.append(cur.strip()); cur = ""
        else: cur += ch
    if cur.strip(): out.append(cur.strip())
    return out

def parse(text):
    I = Ins(); I.text = text
    t = text.split(";")[0].strip()
    parts = t.split(None, 1)
    mn = parts[0]; I.mn = mn
    rest = parts[1] if len(parts) > 1 else ""
    ops = split_ops(rest)
    mods = ""
    if ops:
        sp = ops[-1].split(None, 1)
        ops[-1] = sp[0]
        if len(sp) > 1: mods = sp[1]
    R = [regs_of(o) for o in ops]
    U = lambda l: set().union(*l) if l else set()
    I.defs, I.uses, I.srcc, I.ab, I.states, I.wide, I.dpp, I.data = set(), set(), set(), set(), 1, False, False, set()
    if mn.startswith("v_mfma"):
        I.kind = "mfma"; I.defs = R[0]; I.ab = R[1] | R[2]; I.srcc = R[3]; I.uses = I.ab | I.srcc
    elif mn.startswith("v_"):
        I.kind = "valu"
        if mn.startswith(TRANS): I.kind = "trans"
        if mn.startswith("v_dot"): I.kind = "dot"
        I.defs = set(R[0]); I.uses = U(R[1:])
        if mn.startswith(("v_fmac", "v_dot2c", "v_mac")): I.uses |= R[0]
        if mn.startswith("v_dot"): I.srcc = R[3] if len(R) > 3 else R[0]; I.ab = R[1] | R[2]
        if mn.startswith("v_permlane"): I.defs = R[0] | R[1]; I.uses = R[0] | R[1]
        if mn.startswith("v_cndmask") and len(ops) == 3: I.uses |= regs_of("vcc")
        if "dpp" in mn or "quad_perm" in mods or "row_" in mods: I.dpp = True
    elif mn.startswith("ds_read") or mn.startswith("ds_bpermute") or mn.startswith("ds_swizzle"):
        I.kind = "ds"; I.defs = R[0]; I.uses = U(R[1:])
    elif mn.startswith("ds_"):
        I.kind = "ds"; I.uses = U(R)
    elif mn.startswith(("buffer_", "global_")):
        I.kind = "vmem"
        islds = " lds" in (" " + mods)
        if "load" in mn and not islds:
            I.defs = R[0]; I.uses = U(R[1:])
        else:
            I.uses = U(R)
            if islds: I.uses |= regs_of("m0"); I.kind = "dma"
            if "store" in mn and ("x4" in mn or "x3" in mn):
                I.wide = True; I.data = R[0] if mn.startswith("buffer_") else R[1]
            if "atomic" in mn and "sc0" in mods: I.defs = R[0]
    elif mn == "s_nop":
        I.kind = "nop"; I.states = int(ops[0], 0) + 1
    elif mn.startswith("s_"):
        I.kind = "salu"
        if mn.startswith(("s_cmp", "s_waitcnt", "s_barrier", "s_branch", "s_cbranch", "s_endpgm", "s_sleep", "s_setprio")):
            I.uses = U(R)
        else:
            I.defs = R[0] if R else set(); I.uses = U(R[1:])
            if "saveexec" in mn: I.defs |= regs_of("exec")
    else:
        raise ValueError("unknown instr " + text)
    return I

VALUISH = ("valu", "trans", "dot")

def need(P, I):
    n = 0
    pv = {r for r in P.defs if r[0] != "s"}
    ps = {r for r in P.defs if r[0] == "s"}
    if P.kind in VALUISH:
        if I.kind == "mfma" and pv & I.uses: n = max(n, 2)
        if P.kind == "trans" and I.kind in ("valu", "dot", "mfma") and pv & I.uses: n = max(n, 1)
        if P.kind == "trans" and I.kind in ("ds", "vmem", "dma") and pv & I.uses: n = max(n, 1)
        if ps:
            if I.kind in VALUISH + ("mfma",) and ps & I.uses: n = max(n, 4 if "lane" in I.mn else 2)
            if I.kind in ("vmem", "dma") and ps & I.uses: n = max(n, 5)
            if I.kind == "salu" and ps & I.uses: n = max(n, 1)
        if I.dpp and pv & I.uses: n = max(n, 2)
        if I.mn.startswith("v_permlane") and pv & I.uses: n = max(n, 2)
        if I.mn.startswith(("v_readfirstlane", "v_readlane")) and pv & I.uses: n = max(n, 1)
        if P.kind == "dot":
            if I.mn == P.mn:
                if pv & I.ab: n = max(n, 3)
            elif pv & (I.uses | I.defs): n = max(n, 3)
    if P.kind == "mfma":
        big = "32x32" in P.mn
        a, b, c = (10, 12, 7) if big else (6, 8, 3)
        if I.kind == "mfma":
            if I.srcc & P.defs and I.srcc != P.defs: n = max(n, a)
            if I.ab & P.defs: n = max(n, b)
            if I.defs & P.defs and not (I.srcc & P.defs): n = max(n, a)
        elif (I.uses | I.defs) & P.defs: n = max(n, b)
        if I.kind in VALUISH and I.defs & P.srcc: n = max(n, c)
    if P.kind == "salu" and ("s", 124) in P.defs and I.kind == "dma": n = max(n, 1)
    if P.wide and I.defs & P.data: n = max(n, 2)
    return n

class Stream:
    def __init__(self, name="", nv=256, reserved=()):
        self.lines = []
        self.hist = []
        self.vm = []
        self.lg = []
        self.free = [True] * nv
        for r in reserved: self.free[r] = False
        self.maxv = 0
        self.ninstr = 0
        self.tagc = 0
        self.smem_out = False
    def alloc(self, n=1, align=None):
        if align is None: align = 1 if n == 1 else 2
        rng = range(0, len(self.free) - n + 1, align)
        if n < 4: rng = reversed(rng)
        for b in rng:
            if all(self.free[b:b + n]):
                for i in range(b, b + n): self.free[i] = False
                self.maxv = max(self.maxv, b + n)
                return b
        raise RuntimeError("out of VGPRs (need %d, free %d)" % (n, sum(self.free)))
    def release(self, b, n=1):
        for i in range(b, b + n):
            assert not self.free[i], "double free v%d" % i
            self.free[i] = True
    def nfree(self): return sum(self.free)
    def alloc4(self, k): return [self.alloc(4, 4) for _ in range(k)]
    def release4(self, l):
        for b in l: self.release(b, 4)
    def raw(self, text):
        self.lines.append(text)
    def label(self, name):
        self.lines.append(name + ":")
    def comment(self, c): self.lines.append("    ; " + c)
    def flush_hazards(self):
        self.e("s_nop 7");
    def e(self, text, tag=None):
        I = parse(text)
        d = 0; req = 0
        for P in reversed(self.hist):
            if d >= 12: break
            req = max(req, need(P, I) - d)
            d += P.states
        while req > 0:
            k = min(req, 16)
            N = parse("s_nop %d" % (k - 1))
            self.lines.append("    " + N.text); self.hist.append(N); self.ninstr += 1
            req -= k
        self.lines.append("    " + text)
        self.hist.append(I); self.ninstr += 1
        if len(self.hist) > 40: del self.hist[:20]
        if I.kind in ("vmem", "dma"):
            if tag is None: self.tagc += 1; tag = ("vm", self.tagc)
            self.vm.append(tag); return tag
        if I.kind == "ds":
            if tag is None: self.tagc += 1; tag = ("lg", self.tagc)
            self.lg.append(tag); return tag
        return None
    def wait_vm(self, tags):
        if not isinstance(tags, (list, set)): tags = [tags]
        idx = [i for i, t in enumerate(self.vm) if t in tags]
        if not idx: return
        last = max(idx)
        n = len(self.vm) - 1 - last
        n = min(n, 63)
        self.e("s_waitcnt vmcnt(%d)" % n)
        self.vm = self.vm[len(self.vm) - n:] if n else []
    def wait_lg(self, tags):
        if not isinstance(tags, (list, set)): tags = [tags]
        idx = [i for i, t in enumerate(self.lg) if t in tags]
        if not idx: return
        last = max(idx)
        n = len(self.lg) - 1 - last
        n = min(n, 15)
        self.e("s_waitcnt lgkmcnt(%d)" % n)
        self.lg = self.lg[len(self.lg) - n:] if n else []
    def wait_lg_all(self):
        self.e("s_waitcnt lgkmcnt(0)"); self.lg = []
    def wait_vm_all(self):
        self.e("s_waitcnt vmcnt(0)"); self.vm = []
    def fork(self):
        s = Stream.__new__(Stream)
        s.lines = []; s.hist = list(self.hist); s.vm = list(self.vm); s.lg = list(self.lg)
        s.free = list(self.free); s.maxv = self.maxv; s.ninstr = 0; s.tagc = self.tagc; s.smem_out = False
        return s

def v(b, n=1):
    return "v%d" % b if n == 1 else "v[%d:%d]" % (b, b + n - 1)
def s(b, n=1):
    return "s%d" % b if n == 1 else "s[%d:%d]" % (b, b + n - 1)

def kernel_header(name):
    return [".text", ".globl " + name, ".p2align 8", ".type %s,@function" % name, name + ":"]

def kernel_desc(name, nvgpr, nsgpr):
    acc = min(256, (nvgpr + 3) // 4 * 4)
    return ['.section .rodata,"a"', ".p2align 6", ".amdhsa_kernel " + name,
            "  .amdhsa_next_free_vgpr %d" % nvgpr, "  .amdhsa_next_free_sgpr %d" % nsgpr,
            "  .amdhsa_accum_offset %d" % acc, "  .amdhsa_group_segment_fixed_size 0", "  .amdhsa_kernarg_size 80",
            "  .amdhsa_user_sgpr_count 2", "  .amdhsa_user_sgpr_kernarg_segment_ptr 1",
            "  .amdhsa_system_sgpr_workgroup_id_x 1", ".end_amdhsa_kernel"]
```

```python
from asmlib import *

WS_PART = 0
WS_O    = 0x2400000
WS_WOT  = 0x2640000
WS_KVP  = 0x2700000
KVP_STRIDE = 6912
WS_DBG  = 0x3000000
NUNIT = 30
SCR   = NUNIT * 4096
MISC  = SCR + 32768
WPH   = MISC
ZERO  = MISC + 1792
RLT   = MISC + 1920
KVB   = MISC + 2560
LDS_BYTES = 163840
XB = 88 * 1024
PHK = SCR
VV  = SCR + 20480
LOG2E = 0x3fb8aa3b
OOB = 0x7ffffff0

S_X, S_WQ, S_W1, S_W2, S_WS, S_WO, S_WP, S_DBG = 8, 12, 16, 20, 24, 28, 32, 36
sI, sJ, sTG, sNH, sWV = 40, 41, 42, 43, 44
sQB, sW1F, sW1H, sW2F, sW2H, sM0, sT0, sT1, sPART, sT2, sT3, sONE_LO, sONE_HI, sONES = 45, 46, 47, 48, 49, 50, 51, 52, 53, 54, 55, 56, 57, 58
sEX = 60
sST = 64

DEPTH = 4

class Unit:
    def __init__(self, kind, a, b=0, size=1):
        self.kind, self.a, self.b, self.size = kind, a, b, size
        self.first = None; self.last = None; self.pos = None; self.issue = None; self.cls = None
        self.notbefore = 0

class Step:
    def __init__(self, unit, tile, sub, acc, bregs, first):
        self.unit, self.tile, self.sub, self.acc, self.bregs, self.first = unit, tile, sub, acc, bregs, first
        self.pre = None
        self.seg_start = False

def gen_k1(name, opts):
    dbg = opts.get("dbg", 0)
    stamps = opts.get("stamps", 0)
    st_policy = opts.get("part_policy", "")
    S = Stream(nv=256, reserved=[0])
    e = S.e
    nst = [0]
    def stamp(St):
        if stamps:
            St.e(f"s_memrealtime s[{sST + 2*nst[0]}:{sST + 2*nst[0] + 1}]")
            nst[0] += 1
    e("s_cmp_ge_u32 s2, 256"); e("s_cbranch_scc1 L_k1_end")
    stamp(S)
    e("s_load_dwordx4 s[64:67], s[0:1], 0" if not stamps else "s_load_dwordx4 s[96:99], s[0:1], 0")
    kb = 64 if not stamps else 96
    e(f"s_load_dwordx4 s[4:7], s[0:1], 16")
    e(f"s_load_dwordx4 s[{S_W1}:{S_W1+3}], s[0:1], 40")
    e(f"s_load_dwordx4 s[{S_DBG}:{S_DBG+3}], s[0:1], 64")
    vL = S.alloc(); vT = S.alloc(); vT2 = S.alloc(); vT3 = S.alloc()
    e(f"v_and_b32 {v(vL)}, 63, v0")
    e(f"v_lshrrev_b32 {v(vT)}, 6, v0")
    e(f"v_readfirstlane_b32 {s(sWV)}, {v(vT)}")
    e(f"s_and_b32 {s(sT0)}, s2, 7")
    e(f"s_lshr_b32 {s(sI)}, s2, 4")
    e(f"s_bfe_u32 {s(sT1)}, s2, 0x10003")
    e(f"s_lshl_b32 {s(sJ)}, {s(sT0)}, 1"); e(f"s_add_u32 {s(sJ)}, {s(sJ)}, {s(sT1)}")
    e(f"s_and_b32 {s(sTG)}, {s(sWV)}, 3"); e(f"s_lshr_b32 {s(sNH)}, {s(sWV)}, 2")
    e(f"s_mul_i32 {s(sQB)}, {s(sJ)}, 72")
    e(f"s_mul_i32 {s(sT2)}, {s(sT0)}, 576")
    e(f"s_mul_i32 {s(sT3)}, {s(sT1)}, 320"); e(f"s_add_u32 {s(sT3)}, {s(sT3)}, {s(sT2)}")
    e(f"s_lshl_b32 {s(sW1F)}, {s(sT3)}, 1"); e(f"s_mul_i32 {s(sW2F)}, {s(sT3)}, 1152")
    e(f"s_lshl_b32 {s(sT3)}, {s(sT1)}, 5"); e(f"s_add_u32 {s(sT3)}, {s(sT3)}, {s(sT2)}"); e(f"s_add_u32 {s(sT3)}, {s(sT3)}, 256")
    e(f"s_lshl_b32 {s(sW1H)}, {s(sT3)}, 1"); e(f"s_mul_i32 {s(sW2H)}, {s(sT3)}, 1152")
    e(f"s_lshl_b32 {s(sM0)}, {s(sTG)}, 10")
    e(f"s_mov_b32 {s(sONE_LO)}, 0x00003f80"); e(f"s_mov_b32 {s(sONE_HI)}, 0x3f800000"); e(f"s_mov_b32 {s(sONES)}, 0x3f803f80")
    vXA = S.alloc()
    e(f"v_lshrrev_b32 {v(vT)}, 3, {v(vL)}")
    e(f"v_mul_u32_u24 {v(vXA)}, 1152, {v(vT)}")
    e(f"v_and_b32 {v(vT2)}, 7, {v(vL)}")
    e(f"v_lshl_add_u32 {v(vXA)}, {v(vT2)}, 4, {v(vXA)}")
    e(f"s_lshl_b32 {s(sT2)}, {s(sI)}, 3"); e(f"s_add_u32 {s(sT2)}, {s(sT2)}, {s(sWV)}"); e(f"s_mul_i32 {s(sT2)}, {s(sT2)}, {16*1152}")
    e(f"s_add_u32 {s(sT3)}, {s(sT2)}, {8*1152}")
    e("s_waitcnt lgkmcnt(0)")
    def srd(b, lo, hi, n):
        e(f"s_mov_b32 {s(b)}, {s(lo)}"); e(f"s_mov_b32 {s(b+1)}, {s(hi)}"); e(f"s_mov_b32 {s(b+2)}, {n}"); e(f"s_mov_b32 {s(b+3)}, 0x20000")
    srd(S_X, kb, kb + 1, 2048 * 1152)
    XR = S.alloc(72, 4)
    xt = {}
    for m in range(9):
        for st in range(2):
            xt[(st, m)] = e(f"buffer_load_dwordx4 {v(XR + (st*9+m)*4, 4)}, {v(vXA)}, {s(S_X,4)}, {s(sT3 if st else sT2)} offen offset:{m*128}")
    srd(S_WQ, kb + 2, kb + 3, 576 * 3456)
    srd(S_W2, S_W1 + 2, S_W1 + 3, 4608 * 1152)
    e(f"s_mov_b32 {s(S_W1+2)}, {576*9216}"); e(f"s_mov_b32 {s(S_W1+3)}, 0x20000")
    srd(S_WS, S_DBG + 2, S_DBG + 3, 0x10000000)
    e(f"s_mov_b32 {s(S_DBG+2)}, 256"); e(f"s_mov_b32 {s(S_DBG+3)}, 0x20000")
    srd(S_WP, 4, 5, 32 * 648)
    srd(S_WO, 6, 7, 576 * 1152)
    S.release(vXA)
    vG = S.alloc(); vC = S.alloc(); vRP = S.alloc(); vCP = S.alloc(); vL16 = S.alloc()
    e(f"v_lshrrev_b32 {v(vG)}, 4, {v(vL)}")
    e(f"v_and_b32 {v(vC)}, 15, {v(vL)}")
    e(f"v_bfe_u32 {v(vRP)}, {v(vL)}, 2, 2")
    e(f"v_and_b32 {v(vCP)}, 3, {v(vL)}")
    e(f"v_lshlrev_b32 {v(vL16)}, 4, {v(vL)}")
    vQ = S.alloc(); vW1F = S.alloc(); vW1H = S.alloc(); vW2 = S.alloc()
    e(f"s_lshl_b32 {s(sT0)}, {s(sTG)}, 1"); e(f"s_and_b32 {s(sT0)}, {s(sT0)}, 4")
    e(f"v_or_b32 {v(vT)}, {s(sT0)}, {v(vG)}")
    e(f"v_lshlrev_b32 {v(vT)}, 1, {v(vT)}")
    e(f"v_xor_b32 {v(vT)}, {v(vT)}, {v(vC)}")
    e(f"v_mul_u32_u24 {v(vT2)}, 52, {v(vT)}"); e(f"v_lshrrev_b32 {v(vT2)}, 8, {v(vT2)}")
    e(f"v_mul_u32_u24 {v(vT3)}, {1152 - 80}, {v(vT2)}")
    e(f"v_lshl_add_u32 {v(vQ)}, {v(vT)}, 4, {v(vT3)}")
    e(f"v_cmp_eq_u32 vcc, 2, {v(vT2)}")
    e(f"v_subrev_u32 {v(vT3)}, 8, {v(vQ)}")
    e(f"v_cndmask_b32 {v(vQ)}, {v(vQ)}, {v(vT3)}, vcc")
    e(f"s_lshl_b32 {s(sT0)}, {s(sWV)}, 2")
    e(f"v_add_u32 {v(vT)}, {s(sT0)}, {v(vG)}")
    e(f"v_mul_u32_u24 {v(vT)}, 3456, {v(vT)}")
    e(f"v_add_u32 {v(vQ)}, {v(vQ)}, {v(vT)}")
    e(f"v_cmp_eq_u32 vcc, 3, {v(vT2)}")
    e(f"v_mov_b32 {v(vT3)}, {OOB}")
    e(f"v_cndmask_b32 {v(vQ)}, {v(vQ)}, {v(vT3)}, vcc")
    e(f"v_and_b32 {v(vT)}, 1, {v(vG)}")
    e(f"s_and_b32 {s(sT0)}, {s(sTG)}, 1"); e(f"s_lshl_b32 {s(sT0)}, {s(sT0)}, 1")
    e(f"v_or_b32 {v(vT)}, {s(sT0)}, {v(vT)}")
    e(f"v_lshlrev_b32 {v(vT)}, 1, {v(vT)}")
    e(f"v_and_b32 {v(vT2)}, 7, {v(vL)}")
    e(f"v_xor_b32 {v(vT)}, {v(vT)}, {v(vT2)}")
    e(f"v_lshrrev_b32 {v(vT3)}, 3, {v(vL)}")
    e(f"s_lshl_b32 {s(sT0)}, {s(sTG)}, 3")
    e(f"v_add_u32 {v(vT3)}, {s(sT0)}, {v(vT3)}")
    e(f"v_mul_u32_u24 {v(vW1F)}, 9216, {v(vT3)}")
    e(f"v_lshl_add_u32 {v(vW1F)}, {v(vT)}, 4, {v(vW1F)}")
    e(f"v_lshlrev_b32 {v(vT)}, 1, {v(vG)}")
    e(f"v_xor_b32 {v(vT)}, {v(vT)}, {v(vT2)}")
    e(f"v_mul_u32_u24 {v(vW2)}, 1152, {v(vT3)}")
    e(f"v_lshl_add_u32 {v(vW2)}, {v(vT)}, 4, {v(vW2)}")
    e(f"v_lshrrev_b32 {v(vT)}, 5, {v(vL)}"); e(f"v_lshlrev_b32 {v(vT)}, 1, {v(vT)}")
    e(f"v_xor_b32 {v(vT)}, {v(vT)}, {v(vCP)}")
    e(f"v_lshrrev_b32 {v(vT3)}, 2, {v(vL)}")
    e(f"s_lshl_b32 {s(sT0)}, {s(sTG)}, 4")
    e(f"v_add_u32 {v(vT3)}, {s(sT0)}, {v(vT3)}")
    e(f"v_mul_u32_u24 {v(vW1H)}, 9216, {v(vT3)}")
    e(f"v_lshl_add_u32 {v(vW1H)}, {v(vT)}, 4, {v(vW1H)}")

    UQ = [Unit("Q", u, size=2) for u in range(18)]
    UF = [[Unit("F", b, u) for u in range(18)] for b in range(4)]
    UH = [Unit("H", u2) for u2 in range(9)]
    UW = [[[Unit("W", b, (c, k)) for k in range(4 + c)] for c in range(2)] for b in range(9)]
    NE = 1 + 6 + 12 + 21 + 1
    ep_steps = [[[] for _ in range(NE)] for _ in range(2)]
    R = [dict(), dict()]
    def lazy(c, key): return lambda: R[c][key]
    for c in range(2):
        nt = 4 - c
        for u in range(18):
            for t in range(nt):
                ep_steps[c][1 + u // 3].append(Step(UQ[u], t, 0, lazy(c, ("qacc", t)), lazy(c, ("x", u)), u == 0))
        for b in range(4):
            for u in range(18):
                for t in range(2):
                    ep_steps[c][7 + 3 * b + u // 6].append(Step(UF[b][u], t, 0, lazy(c, ("facc", b, t)), lazy(c, ("x", u)), u == 0))
    EH = 19
    for u in range(18):
        for t in range(2):
            ep_steps[1][EH + u // 6].append(Step(UH[u // 2], t, u % 2, lazy(1, ("facc", 4, t)), lazy(1, ("x", u)), u == 0))
    for c in range(2):
        for h in range(18):
            b, ph = divmod(h, 2)
            for k in range(4 + c):
                for t in range(2):
                    ep_steps[c][EH + h + 3 * c].append(Step(UW[b][c][k], 2 * ph + t, 0, lazy(c, ("pacc", h, t)), lazy(c, ("h", k)), c == 0 and k == 0))
    last_ep = [EH + 18, EH + 21]
    flat = [[], []]
    for c in range(2):
        for ep in range(NE):
            for st in ep_steps[c][ep]:
                st.ep = ep; flat[c].append(st)
        for n, st in enumerate(flat[c]):
            st.idx = n
            rd_ep = flat[c][max(0, n - DEPTH)].ep
            u = st.unit
            u.first = rd_ep if u.first is None else min(u.first, rd_ep)
            u.last = st.ep if u.last is None else max(u.last, st.ep)
            if not hasattr(u, "order"): u.order = (rd_ep, st.ep, n)
            else: u.order = min(u.order, (rd_ep, st.ep, n))
    units = UQ + [u for b in UF for u in b] + UH + [u for b in UW for cc in b for u in cc]
    units.sort(key=lambda u: u.order)
    busy = [0] * NUNIT
    for p_ in range(22, 30): busy[p_] = 4
    ep_issue = [[[] for _ in range(NE)] for _ in range(2)]
    prev_issue = 0
    tog = 0
    for u in units:
        pos = min(range(0, NUNIT, u.size), key=lambda p_: (max(max(busy[p_:p_ + u.size]), prev_issue), p_))
        u.pos = pos
        u.issue = max([busy[pos + q] for q in range(u.size)] + [prev_issue])
        prev_issue = u.issue
        assert u.issue < u.first, ("unit issued too late", u.kind, u.a, u.b, u.issue, u.first)
        for q in range(u.size): busy[pos + q] = u.last + 1
        if u.kind == "Q": cl = [0, 1]
        elif u.issue >= EH and u.issue <= last_ep[0] - 1: cl = [0]
        elif u.issue > last_ep[0] - 1: cl = [1]
        else: cl = [tog]; tog ^= 1
        u.cls = cl
        for c in cl: ep_issue[c][u.issue].append(u)
    if opts.get("verbose"):
        for ep in range(NE):
            print(ep, [len(ep_steps[c][ep]) for c in range(2)], "issue", [len(ep_issue[c][ep]) for c in range(2)],
                  "minslack", min([u.first - u.issue for c in range(2) for u in ep_issue[c][ep]] + [99]))

    def dma(St, u, c):
        if u.kind == "Q":
            so, base, vo, srd_ = u.a * 32 * 3456, sQB, vQ, S_WQ; ld = u.pos * 4096 + c * 4096
        elif u.kind == "F":
            so, base, vo, srd_ = u.a * 128 + u.b * 32 * 9216, sW1F, vW1F, S_W1; ld = u.pos * 4096
        elif u.kind == "H":
            so, base, vo, srd_ = u.a * 64 * 9216, sW1H, vW1H, S_W1; ld = u.pos * 4096
        else:
            cc, k = u.b
            if k < 4: so, base = u.a * 128 + (64 * k + 32 * cc) * 1152, sW2F
            else: so, base = u.a * 128, sW2H
            vo, srd_ = vW2, S_W2; ld = u.pos * 4096
        St.e(f"s_add_u32 {s(sT0)}, {s(base)}, {so}")
        St.e(f"s_add_u32 m0, {s(sM0)}, {ld}")
        St.e(f"buffer_load_dwordx4 {v(vo)}, {s(srd_,4)}, {s(sT0)} offen lds", tag=("u", id(u)))

    e(f"s_lshl_b32 {s(sT1)}, {s(sWV)}, 10")
    for u in ep_issue[0][0]:
        assert u.kind == "Q"
        e(f"s_add_u32 {s(sT0)}, {s(sQB)}, {u.a * 32 * 3456}")
        e(f"s_add_u32 m0, {s(sT1)}, {u.pos * 4096}")
        e(f"buffer_load_dwordx4 {v(vQ)}, {s(S_WQ,4)}, {s(sT0)} offen lds", tag=("u", id(u)))
    ep_issue[0][0] = []; ep_issue[1][0] = []

    vD = S.alloc()
    if opts.get("touch", 1):
        e(f"v_mul_u32_u24 {v(vT)}, 205, v0"); e(f"v_lshrrev_b32 {v(vT)}, 10, {v(vT)}")
        e(f"v_mul_u32_u24 {v(vT2)}, {9216 - 640}, {v(vT)}")
        e(f"v_lshl_add_u32 {v(vT2)}, v0, 7, {v(vT2)}")
        e(f"v_cmp_gt_u32 vcc, 180, v0"); e(f"v_mov_b32 {v(vT3)}, {OOB}")
        e(f"v_cndmask_b32 {v(vT2)}, {v(vT3)}, {v(vT2)}, vcc")
        e(f"s_min_u32 {s(sT0)}, {s(sW1F)}, {s(sW1H)}"); e(f"s_and_b32 {s(sT0)}, {s(sT0)}, 0xffffff80")
        e(f"s_mul_i32 {s(sT1)}, {s(sI)}, {36*9216}"); e(f"s_add_u32 {s(sT0)}, {s(sT0)}, {s(sT1)}")
        e(f"s_cmp_ge_u32 {s(sWV)}, 3"); e("s_cbranch_scc1 L_k1_t1")
        S.raw(f"    buffer_load_dword {v(vD)}, {v(vT2)}, {s(S_W1,4)}, {s(sT0)} offen")
        S.raw("    s_branch L_k1_t3")
        S.label("L_k1_t1")
        S.raw(f"    v_subrev_u32 {v(vT)}, 192, v0")
        S.raw(f"    v_cmp_gt_u32 vcc, 162, {v(vT)}")
        S.raw(f"    v_lshlrev_b32 {v(vT2)}, 7, {v(vT)}")
        S.raw(f"    s_nop 1")
        S.raw(f"    v_cndmask_b32 {v(vT2)}, {v(vT3)}, {v(vT2)}, vcc")
        S.raw(f"    s_min_u32 {s(sT0)}, {s(sW2F)}, {s(sW2H)}")
        S.raw(f"    s_mul_i32 {s(sT1)}, {s(sI)}, {162*128}")
        S.raw(f"    s_add_u32 {s(sT0)}, {s(sT0)}, {s(sT1)}")
        S.raw(f"    s_cmp_ge_u32 {s(sWV)}, 6")
        S.raw(f"    s_cbranch_scc1 L_k1_t2")
        S.raw(f"    buffer_load_dword {v(vD)}, {v(vT2)}, {s(S_W2,4)}, {s(sT0)} offen")
        S.raw("    s_branch L_k1_t3")
        S.label("L_k1_t2")
        S.raw(f"    v_subrev_u32 {v(vT)}, 384, v0")
        S.raw(f"    v_cmp_gt_u32 vcc, 108, {v(vT)}")
        S.raw(f"    v_mul_u32_u24 {v(vT2)}, 1152, {v(vT)}")
        S.raw(f"    s_nop 1")
        S.raw(f"    v_cndmask_b32 {v(vT2)}, {v(vT3)}, {v(vT2)}, vcc")
        S.raw(f"    s_mul_i32 {s(sT1)}, {s(sI)}, {36*3456}")
        S.raw(f"    s_add_u32 {s(sT0)}, {s(sQB)}, {s(sT1)}")
        S.raw(f"    buffer_load_dword {v(vD)}, {v(vT2)}, {s(S_WQ,4)}, {s(sT0)} offen offset:68")
        S.label("L_k1_t3")
        S.vm.append(("touch", 0))
        e(f"v_subrev_u32 {v(vT)}, 384, v0")
        e(f"v_cmp_gt_u32 vcc, 108, {v(vT)}")
        e(f"v_mul_u32_u24 {v(vT2)}, 1152, {v(vT)}")
        e(f"v_cndmask_b32 {v(vT2)}, {v(vT3)}, {v(vT2)}, vcc")
        e(f"s_mul_i32 {s(sT1)}, {s(sI)}, {36*3456}")
        e(f"s_add_u32 {s(sT0)}, {s(sQB)}, {s(sT1)}")
        e(f"buffer_load_dword {v(vD)}, {v(vT2)}, {s(S_WQ,4)}, {s(sT0)} offen")

    vP0 = S.alloc(); vP1 = S.alloc(); vPA0 = S.alloc(); vPA1 = S.alloc()
    e(f"s_mul_i32 {s(sT0)}, {s(sJ)}, 1296")
    e(f"v_lshlrev_b32 {v(vT)}, 1, v0")
    tp0 = e(f"buffer_load_ushort {v(vP0)}, {v(vT)}, {s(S_WP,4)}, {s(sT0)} offen")
    tp1 = e(f"buffer_load_ushort {v(vP1)}, {v(vT)}, {s(S_WP,4)}, {s(sT0)} offen offset:1024")
    for k, va in ((0, vPA0), (512, vPA1)):
        e(f"v_add_u32 {v(vT)}, {k}, v0")
        e(f"v_mul_u32_u24 {v(vT2)}, 7282, {v(vT)}"); e(f"v_lshrrev_b32 {v(vT2)}, 16, {v(vT2)}")
        e(f"v_mul_u32_u24 {v(vT2)}, 6, {v(vT2)}")
        e(f"v_lshl_add_u32 {v(va)}, {v(vT)}, 1, {v(vT2)}")
        e(f"v_add_u32 {v(va)}, {WPH}, {v(va)}")
    e(f"v_cmp_gt_u32 vcc, 136, v0"); e(f"v_mov_b32 {v(vT3)}, {MISC + 8000}")
    e(f"v_cndmask_b32 {v(vPA1)}, {v(vT3)}, {v(vPA1)}, vcc")
    WJ = S.alloc(10, 2); vWA = S.alloc()
    e(f"v_mul_u32_u24 {v(vWA)}, {9*1152}, {v(vG)}")
    e(f"v_lshl_add_u32 {v(vWA)}, {v(vC)}, 1, {v(vWA)}")
    e(f"s_lshl_b32 {s(sT2)}, {s(sI)}, 3"); e(f"s_add_u32 {s(sT2)}, {s(sT2)}, {s(sWV)}")
    e(f"s_mul_i32 {s(sT0)}, {s(sJ)}, {36*1152}"); e(f"s_lshl_b32 {s(sT1)}, {s(sT2)}, 5"); e(f"s_add_u32 {s(sT0)}, {s(sT0)}, {s(sT1)}")
    e(f"s_cmp_lt_u32 {s(sT2)}, 36"); e(f"s_cselect_b32 {s(sT1)}, 0, {OOB - 0x100000}")
    e(f"v_add_u32 {v(vWA)}, {s(sT1)}, {v(vWA)}")
    wt = []
    for jj in range(9):
        if jj % 3 == 0 and jj: e(f"v_add_u32 {v(vWA)}, {3*1152}, {v(vWA)}")
        wt.append(e(f"buffer_load_ushort {v(WJ+jj)}, {v(vWA)}, {s(S_WO,4)}, {s(sT0)} offen offset:{(jj%3)*1152}"))
    ZR = S.alloc(4, 4)
    for q in range(4): e(f"v_mov_b32 {v(ZR+q)}, 0")
    e(f"v_lshlrev_b32 {v(vT)}, 4, v0")
    e(f"v_cmp_gt_u32 vcc, 300, v0"); e(f"s_and_saveexec_b64 {s(sEX,2)}, vcc")
    e(f"v_add_u32 {v(vT)}, {ZERO}, {v(vT)}")
    e(f"ds_write_b128 {v(vT)}, {v(ZR,4)}")
    e(f"s_mov_b64 exec, {s(sEX,2)}")
    S.wait_lg_all()
    e("s_barrier")
    S.release(ZR, 4)

    SM = S.alloc(4, 2)
    for m in range(9):
        for st in range(2):
            S.wait_vm(xt[(st, m)])
            for q in range(4):
                r_ = XR + (st * 9 + m) * 4 + q
                first = (m == 0 and q == 0)
                e(f"v_dot2_f32_bf16 {v(SM+st)}, {v(r_)}, {s(sONES)}, {'0' if first else v(SM+st)}")
                e(f"v_dot2_f32_bf16 {v(SM+2+st)}, {v(r_)}, {v(r_)}, {'0' if first else v(SM+2+st)}")
    for pat in ("quad_perm:[1,0,3,2]", "quad_perm:[2,3,0,1]", "row_half_mirror"):
        for q in range(4):
            e(f"v_add_f32_dpp {v(SM+q)}, {v(SM+q)}, {v(SM+q)} {pat} row_mask:0xf bank_mask:0xf")
    inv = "0x3ae38e39"
    for st in range(2):
        e(f"v_mul_f32 {v(SM+st)}, 0xbae38e39, {v(SM+st)}")
    vXW = S.alloc()
    e(f"v_and_b32 {v(vT)}, 7, {v(vL)}")
    e(f"v_lshrrev_b32 {v(vT2)}, 3, {v(vL)}")
    e(f"v_xor_b32 {v(vT2)}, {v(vT2)}, {v(vT)}")
    e(f"v_lshlrev_b32 {v(vXW)}, 8, {v(vCP)}")
    e(f"v_lshl_add_u32 {v(vXW)}, {v(vT2)}, 4, {v(vXW)}")
    e(f"v_lshrrev_b32 {v(vT)}, 2, {v(vT)}")
    e(f"v_lshl_add_u32 {v(vXW)}, {v(vT)}, 13, {v(vXW)}")
    e(f"s_lshl_b32 {s(sT0)}, {s(sWV)}, 10"); e(f"s_add_u32 {s(sT0)}, {s(sT0)}, {XB}")
    e(f"v_add_u32 {v(vXW)}, {s(sT0)}, {v(vXW)}")
    tA = S.alloc(); tB = S.alloc(); tC = S.alloc(); tD = S.alloc()
    def center(St, st, m):
        for q in range(0, 4, 2):
            r_ = XR + (st * 9 + m) * 4 + q
            St.e(f"v_dot2_f32_bf16 {v(tA)}, {v(r_)}, {s(sONE_LO)}, {v(SM+st)}")
            St.e(f"v_dot2_f32_bf16 {v(tB)}, {v(r_)}, {s(sONE_HI)}, {v(SM+st)}")
            St.e(f"v_dot2_f32_bf16 {v(tC)}, {v(r_+1)}, {s(sONE_LO)}, {v(SM+st)}")
            St.e(f"v_dot2_f32_bf16 {v(tD)}, {v(r_+1)}, {s(sONE_HI)}, {v(SM+st)}")
            St.e(f"v_cvt_pk_bf16_f32 {v(r_)}, {v(tA)}, {v(tB)}")
            St.e(f"v_cvt_pk_bf16_f32 {v(r_+1)}, {v(tC)}, {v(tD)}")
    def xwrite(St, st, m):
        off = st * 128 + (m % 4 if m < 8 else 3) * 16384
        St.e(f"ds_write_b128 {v(vXW)}, {v(XR + (st*9+m)*4, 4)} offset:{off}")
    for m in range(4):
        for st in range(2):
            center(S, st, m); xwrite(S, st, m)
    for st in range(2):
        e(f"v_mul_f32 {v(SM+2+st)}, {inv}, {v(SM+2+st)}")
        e(f"v_fma_f32 {v(SM+2+st)}, -{v(SM+st)}, {v(SM+st)}, {v(SM+2+st)}")
        e(f"v_max_f32 {v(SM+2+st)}, 0, {v(SM+2+st)}")
        e(f"v_add_f32 {v(SM+2+st)}, 0x3727c5ac, {v(SM+2+st)}")
        e(f"v_rsq_f32 {v(SM+2+st)}, {v(SM+2+st)}")
        e(f"v_mul_f32 {v(SM+2+st)}, {LOG2E}, {v(SM+2+st)}")
    e(f"v_lshrrev_b32 {v(vT)}, 3, {v(vL)}"); e(f"v_lshlrev_b32 {v(vT)}, 2, {v(vT)}")
    e(f"s_lshl_b32 {s(sT0)}, {s(sWV)}, 6"); e(f"s_add_u32 {s(sT0)}, {s(sT0)}, {RLT}")
    e(f"v_add_u32 {v(vT)}, {s(sT0)}, {v(vT)}")
    e(f"ds_write_b32 {v(vT)}, {v(SM+2)}"); e(f"ds_write_b32 {v(vT)}, {v(SM+3)} offset:32")
    for m in range(4):
        for st in range(2): S.release(XR + (st * 9 + m) * 4, 4)
    S.wait_vm([tp0, tp1])
    e(f"ds_write_b16 {v(vPA0)}, {v(vP0)}"); e(f"ds_write_b16 {v(vPA1)}, {v(vP1)}")
    for r_ in (vP0, vP1, vPA0, vPA1, vD): S.release(r_)
    S.wait_vm(wt)
    for q in range(4): e(f"v_lshl_or_b32 {v(WJ+q)}, {v(WJ+2*q+1)}, 16, {v(WJ+2*q)}")
    e(f"s_mul_i32 {s(sT0)}, {s(sT2)}, 18"); e(f"s_add_u32 {s(sT1)}, {s(sT0)}, {s(sJ)}"); e(f"s_lshl_b32 {s(sT1)}, {s(sT1)}, 10"); e(f"s_add_u32 {s(sT1)}, {s(sT1)}, {WS_WOT}")
    e(f"s_lshr_b32 {s(sT3)}, {s(sJ)}, 3"); e(f"s_add_u32 {s(sT0)}, {s(sT0)}, {s(sT3)}"); e(f"s_add_u32 {s(sT0)}, {s(sT0)}, 16"); e(f"s_lshl_b32 {s(sT0)}, {s(sT0)}, 10")
    e(f"s_and_b32 {s(sT3)}, {s(sJ)}, 7"); e(f"s_lshl_b32 {s(sT3)}, {s(sT3)}, 1"); e(f"s_add_u32 {s(sT0)}, {s(sT0)}, {s(sT3)}"); e(f"s_add_u32 {s(sT0)}, {s(sT0)}, {WS_WOT}")
    e(f"s_cmp_lt_u32 {s(sT2)}, 36"); e(f"s_cselect_b32 {s(sT3)}, 0, {OOB - 0x100000}")
    e(f"v_add_u32 {v(vWA)}, {s(sT3)}, {v(vL16)}")
    e(f"buffer_store_dwordx4 {v(WJ,4)}, {v(vWA)}, {s(S_WS,4)}, {s(sT1)} offen")
    e(f"buffer_store_short {v(WJ+8)}, {v(vWA)}, {s(S_WS,4)}, {s(sT0)} offen")
    S.release(WJ, 10); S.release(vWA)
    e(f"s_lshl_b32 {s(sT0)}, {s(sJ)}, 6"); e(f"s_lshl_b32 {s(sT1)}, {s(sI)}, 2"); e(f"s_add_u32 {s(sT0)}, {s(sT0)}, {s(sT1)}"); e(f"s_add_u32 {s(sT0)}, {s(sT0)}, {s(sTG)}")
    e(f"s_mul_i32 {s(sPART)}, {s(sT0)}, {36*1024}")
    vXR0 = S.alloc(); vXR1 = S.alloc()
    e(f"v_xor_b32 {v(vT)}, {v(vC)}, {v(vG)}")
    e(f"v_lshlrev_b32 {v(vXR0)}, 8, {v(vG)}")
    e(f"v_lshl_add_u32 {v(vXR0)}, {v(vT)}, 4, {v(vXR0)}")
    e(f"s_lshl_b32 {s(sT0)}, {s(sTG)}, 11"); e(f"s_add_u32 {s(sT0)}, {s(sT0)}, {XB}")
    e(f"v_add_u32 {v(vXR0)}, {s(sT0)}, {v(vXR0)}")
    e(f"v_xor_b32 {v(vXR1)}, 64, {v(vXR0)}")
    e(f"s_cmp_eq_u32 {s(sNH)}, 1"); e("s_cbranch_scc1 L_k1_c1")

    QT = [[[0, 8, 16, 24], [32, 40, 48, 56], [64, 168, 176, 184], [208, 224, 232, 184]],
          [[80, 88, 96, 104], [112, 120, 128, 136], [144, 192, 200, 216]]]
    VG = [{2: [10, 0, 1, 2], 3: [5, 7, 8, 10]}, {2: [10, 3, 4, 6]}]
    def pk(l): return l[0] | l[1] << 8 | l[2] << 16 | l[3] << 24
    out_streams = []
    for c in range(2):
        C = S.fork(); ce = C.e
        nst_c = nst[0]
        def cstamp():
            nonlocal nst_c
            if stamps:
                ce(f"s_memrealtime s[{sST + 2*nst_c}:{sST + 2*nst_c + 1}]"); nst_c += 1
        if c == 1: C.label("L_k1_c1")
        Rc = R[c]
        AD = {}
        def set_addr(kind):
            for k_ in list(AD):
                C.release(AD.pop(k_))
            if kind == "Q":
                ce(f"v_and_b32 {v(vT)}, 1, {v(vG)}"); ce(f"v_lshl_or_b32 {v(vT)}, {v(vT)}, 2, {v(vRP)}"); ce(f"v_lshlrev_b32 {v(vT)}, 5, {v(vT)}")
                ce(f"v_lshl_add_u32 {v(vT2)}, {v(vG)}, 3, {v(vRP)}"); ce(f"v_lshlrev_b32 {v(vT2)}, 8, {v(vT2)}")
                ce(f"v_lshlrev_b32 {v(vT3)}, 3, {v(vCP)}")
                for t in range(4 - c):
                    a = AD[("Q", t, 0)] = C.alloc(); b_ = AD[("Q", t, 1)] = C.alloc()
                    ce(f"s_mov_b32 {s(sT1)}, {pk(QT[c][t])}")
                    ce(f"v_bfe_u32 {v(a)}, {s(sT1)}, {v(vT3)}, 8")
                    ce(f"v_xor_b32 {v(a)}, {v(a)}, {v(vT)}"); ce(f"v_add_u32 {v(a)}, {v(a)}, {v(vT2)}")
                    ce(f"v_add_u32 {v(b_)}, 0x10000, {v(a)}")
            elif kind == "F":
                ce(f"v_and_b32 {v(vT)}, 1, {v(vG)}"); ce(f"v_lshrrev_b32 {v(vT2)}, 1, {v(vRP)}"); ce(f"v_lshl_or_b32 {v(vT)}, {v(vT)}, 1, {v(vT2)}")
                ce(f"v_xor_b32 {v(vT)}, {2*c}, {v(vT)}"); ce(f"v_lshlrev_b32 {v(vT)}, 5, {v(vT)}")
                ce(f"v_lshl_add_u32 {v(vT2)}, {v(vG)}, 3, {v(vRP)}"); ce(f"v_lshl_add_u32 {v(vT)}, {v(vT2)}, 7, {v(vT)}")
                a = [C.alloc() for _ in range(4)]
                ce(f"v_lshl_add_u32 {v(a[0])}, {v(vCP)}, 3, {v(vT)}")
                ce(f"v_xor_b32 {v(a[1])}, 32, {v(a[0])}")
                ce(f"v_add_u32 {v(a[2])}, 0x10000, {v(a[0])}"); ce(f"v_add_u32 {v(a[3])}, 0x10000, {v(a[1])}")
                AD[("F", 0, 0)], AD[("F", 1, 0)], AD[("F", 0, 1)], AD[("F", 1, 1)] = a
            elif kind == "H":
                ce(f"v_and_b32 {v(vT)}, 1, {v(vG)}"); ce(f"v_lshlrev_b32 {v(vT)}, 5, {v(vT)}")
                ce(f"v_lshl_add_u32 {v(vT2)}, {v(vG)}, 3, {v(vRP)}"); ce(f"v_lshl_add_u32 {v(vT)}, {v(vT2)}, 6, {v(vT)}")
                a = [C.alloc() for _ in range(4)]
                ce(f"v_lshl_add_u32 {v(a[0])}, {v(vCP)}, 3, {v(vT)}")
                ce(f"v_xor_b32 {v(a[1])}, 32, {v(a[0])}")
                ce(f"v_add_u32 {v(a[2])}, 0x10000, {v(a[0])}"); ce(f"v_add_u32 {v(a[3])}, 0x10000, {v(a[1])}")
                AD[("H", 0, 0)], AD[("H", 1, 0)], AD[("H", 0, 1)], AD[("H", 1, 1)] = a
            elif kind == "W":
                ce(f"v_and_b32 {v(vT)}, 1, {v(vG)}"); ce(f"v_lshrrev_b32 {v(vT2)}, 1, {v(vRP)}"); ce(f"v_lshl_or_b32 {v(vT)}, {v(vT)}, 1, {v(vT2)}")
                ce(f"v_lshlrev_b32 {v(vT)}, 5, {v(vT)}")
                ce(f"v_lshl_add_u32 {v(vT2)}, {v(vG)}, 2, {v(vRP)}"); ce(f"v_lshl_add_u32 {v(vT)}, {v(vT2)}, 7, {v(vT)}")
                ce(f"v_lshl_add_u32 {v(vT)}, {v(vCP)}, 3, {v(vT)}")
                for t in range(4):
                    a = AD[("W", t, 0)] = C.alloc(); b_ = AD[("W", t, 1)] = C.alloc()
                    ce(f"v_xor_b32 {v(a)}, {32*t}, {v(vT)}")
                    ce(f"v_add_u32 {v(b_)}, 0x10000, {v(a)}")
        HALF = {"Q": 1024, "F": 512, "H": 256, "W": 2048}
        AR = C.alloc(4 * (DEPTH + 1), 4)
        cur_kind = [None]
        def reads(st):
            u = st.unit
            def go(hf):
                if cur_kind[0] != u.kind:
                    set_addr(u.kind); cur_kind[0] = u.kind
                off = u.pos * 4096 + st.sub * 2048 + hf * HALF[u.kind]
                hi = 1 if off >= 0x10000 else 0
                d = AR + 4 * (st.idx % (DEPTH + 1)) + 2 * hf
                ce(f"ds_read_b64_tr_b16 {v(d,2)}, {v(AD[(u.kind, st.tile, hi)])} offset:{off - hi*0x10000}", tag=("a", st.idx, hf))
            return [lambda: go(0), lambda: go(1)]
        F = flat[c]
        def run_step(st, side):
            nxt = F[st.idx + DEPTH] if st.idx + DEPTH < len(F) else None
            rd = reads(nxt) if nxt else []
            if st.pre: st.pre()
            C.wait_lg([("a", st.idx, 0), ("a", st.idx, 1)])
            a = AR + 4 * (st.idx % (DEPTH + 1))
            acc = st.acc(); br = st.bregs()
            half = (len(side) + 1) // 2
            for tt in range(2):
                d = acc[tt]
                ce(f"v_mfma_f32_16x16x32_bf16 {v(d,4)}, {v(a,4)}, {v(br[tt],4)}, {'0' if st.first else v(d,4)}")
                if rd: rd[tt]()
                if tt == 1 and st.tile == 1 and ((c == 0 and st.unit.kind == "F" and st.unit.a == 3) or st.unit.kind == "H"):
                    C.release4(br)
                for it in (side[:half] if tt == 0 else side[half:]): it()
        def run_epoch(ep, side, pre=(), post=()):
            steps = ep_steps[c][ep]
            for it in pre: it()
            dm = [(lambda u=u: dma(C, u, c)) for u in ep_issue[c][ep]]
            n = len(steps)
            if n == 0:
                for it in dm + list(side): it()
            else:
                per = [[] for _ in range(n)]
                for k_, it in enumerate(dm): per[min(n - 1, k_ * max(1, (n - 1) // max(1, len(dm))))].append(it)
                ns = len(side)
                for k_, it in enumerate(side): per[k_ * n // ns].append(it)
                for st, sd in zip(steps, per): run_step(st, sd)
            for it in post: it()
            end_epoch(ep)
        def end_epoch(ep):
            if ep >= last_ep[c]:
                if c == 0:
                    C.wait_vm([("u", id(u)) for u in units if c in u.cls]); C.wait_lg([t for t in C.lg if t[0] == "w"]); ce("s_barrier")
                return
            C.wait_vm([("u", id(u)) for u in units if c in u.cls and u.first <= ep + 1])
            C.wait_lg([t for t in C.lg if t[0] != "a"])
            ce("s_barrier")
        def W(text):
            C.tagc += 1
            return ce(text, tag=("w", C.tagc))

        end_epoch(0)
        cstamp()
        for u in range(18): Rc[("x", u)] = None
        def xread(u):
            Rc[("x", u)] = C.alloc4(2)
            for tt in range(2):
                off = (u % 8 if u < 16 else u - 10) * 8192 + tt * 1024
                ce(f"ds_read_b128 {v(Rc[('x',u)][tt], 4)}, {v(vXR1 if u & 1 else vXR0)} offset:{off}", tag=("x", u))
        for st in F:
            if st.unit.kind == "Q" and st.tile == 0: st.pre = (lambda u=st.unit.a: C.wait_lg(("x", u)))
        for u in range(2): xread(u)
        for st in F[:DEPTH]:
            for it in reads(st): it()
        for u in range(2, 8): xread(u)
        for t in range(4 - c): Rc[("qacc", t)] = C.alloc4(2)
        def cen(ms): return [(lambda m=m, st_=st_: center(C, st_, m)) for m in ms for st_ in range(2)]
        def xw(ms):
            def f(m, st_):
                xwrite(C, st_, m); C.release(XR + (st_ * 9 + m) * 4, 4)
            return [(lambda m=m, st_=st_: f(m, st_)) for m in ms for st_ in range(2)]
        run_epoch(1, cen(range(4, 8)))
        run_epoch(2, xw(range(4, 8)) + cen([8]))
        for r_ in (tA, tB, tC, tD): C.release(r_)
        C.release(SM, 4)
        RLr = C.alloc(2, 2)
        def rlread():
            ce(f"s_lshl_b32 {s(sT1)}, {s(sTG)}, 7"); ce(f"s_add_u32 {s(sT1)}, {s(sT1)}, {RLT}")
            ce(f"v_lshl_add_u32 {v(vT)}, {v(vC)}, 2, {s(sT1)}")
            ce(f"ds_read2_b32 {v(RLr,2)}, {v(vT)} offset0:0 offset1:16", tag=("rl",))
        run_epoch(3, [lambda u=u: xread(u) for u in range(8, 16)] + [rlread])
        run_epoch(4, xw([8]))
        C.release(vXW)
        assert all(u.issue <= 4 for u in UQ)
        C.release(vQ)
        run_epoch(5, [lambda u=u: xread(u) for u in range(16, 18)])
        C.release(vXR0); C.release(vXR1)
        run_epoch(6, [])
        cstamp()
        if dbg == 1:
            dump_regs(C, [Rc[("qacc", t)][q // 4] + q % 4 for t in range(4 - c) for q in range(8)] + [RLr, RLr + 1], vL, vT)
        att = []
        A_ = att.append
        QA = [Rc[("qacc", t)] for t in range(4 - c)]
        st8 = {}
        def scale_pack(t, tt):
            b = QA[t][tt]
            for q in range(4): A_(lambda b=b, q=q: ce(f"v_mul_f32 {v(b+q)}, {v(b+q)}, {v(RLr+tt)}"))
        def att_alloc():
            st8["vk"] = C.alloc(2, 2)
            st8["va"] = C.alloc()
        A_(att_alloc)
        for tt in range(2):
            for t in range(3):
                scale_pack(t, tt)
                for q in range(2):
                    dst = (QA[0][tt], QA[0][tt] + 2, QA[2][tt])[t] + q
                    A_(lambda t=t, tt=tt, q=q, dst=dst: ce(f"v_cvt_pk_bf16_f32 {v(dst)}, {v(QA[t][tt]+2*q)}, {v(QA[t][tt]+2*q+1)}"))
            for q in range(2): A_(lambda tt=tt, q=q: ce(f"v_mov_b32 {v(QA[2][tt] + 2 + q)}, 0"))
        def vaddr(t):
            ce(f"s_mov_b32 {s(sT1)}, {pk([8*a for a in VG[c][t]])}")
            ce(f"v_lshlrev_b32 {v(vT3)}, 3, {v(vG)}")
            ce(f"v_bfe_u32 {v(st8['va'])}, {s(sT1)}, {v(vT3)}, 8")
            ce(f"s_mul_i32 {s(sT1)}, {s(sTG)}, {32*96}"); ce(f"s_add_u32 {s(sT1)}, {s(sT1)}, {VV}")
            ce(f"v_mul_u32_u24 {v(vT3)}, 96, {v(vC)}")
            ce(f"v_add3_u32 {v(st8['va'])}, {v(st8['va'])}, {v(vT3)}, {s(sT1)}")
        A_(lambda: vaddr(2))
        for tt in range(2):
            A_(lambda tt=tt: W(f"ds_write_b64 {v(st8['va'])}, {v(QA[2][tt], 2)} offset:{tt*16*96}"))
        if c == 0:
            A_(lambda: vaddr(3))
            for tt in range(2):
                scale_pack(3, tt)
                for q in range(2):
                    A_(lambda tt=tt, q=q: ce(f"v_cvt_pk_bf16_f32 {v(QA[3][tt]+q)}, {v(QA[3][tt]+2*q)}, {v(QA[3][tt]+2*q+1)}"))
                A_(lambda tt=tt: W(f"ds_write_b64 {v(st8['va'])}, {v(QA[3][tt], 2)} offset:{tt*16*96}"))
            def ones():
                ce(f"v_mov_b32 {v(st8['vk'])}, 0x3f80"); ce(f"v_mov_b32 {v(st8['vk']+1)}, 0")
                ce(f"s_mul_i32 {s(sT1)}, {s(sTG)}, {32*96}"); ce(f"s_add_u32 {s(sT1)}, {s(sT1)}, {VV + 72}")
                ce(f"v_and_b32 {v(vT3)}, 31, {v(vL)}"); ce(f"v_mul_u32_u24 {v(vT3)}, 96, {v(vT3)}")
                ce(f"v_add_u32 {v(st8['va'])}, {s(sT1)}, {v(vT3)}")
                W(f"ds_write_b64 {v(st8['va'])}, {v(st8['vk'],2)}")
            A_(ones)
        def att_free1():
            C.release4(QA[1])
            if c == 0: C.release4(QA[3])
            C.release(st8["vk"], 2); C.release(st8["va"])
            st8["wf"] = C.alloc4(2); st8["p"] = C.alloc4(3)
            st8["p9"] = C.alloc(2, 2)
            st8["wa"] = [C.alloc() for _ in range(3)]
            st8["ep"] = [C.alloc() for _ in range(9)]
            st8["m"] = [st8["p"][2] + 1, st8["p"][2] + 2, st8["p"][2] + 3, C.alloc()]
        A_(att_free1)
        def wphi_addr():
            wa = st8["wa"]
            ce(f"v_lshl_add_u32 {v(vT)}, {v(vG)}, 2, {v(vRP)}")
            ce(f"v_and_b32 {v(vT2)}, 1, {v(vCP)}"); ce(f"v_mul_u32_u24 {v(vT2)}, 24, {v(vT2)}"); ce(f"v_add_u32 {v(vT2)}, {WPH}, {v(vT2)}")
            ce(f"v_mov_b32 {v(vT3)}, {ZERO}")
            ce(f"v_mad_u32_u24 {v(wa[0])}, {v(vT)}, 48, {v(vT2)}")
            ce(f"v_cmp_gt_u32 vcc, 2, {v(vCP)}")
            ce(f"v_add_u32 {v(wa[1])}, {16*48}, {v(wa[0])}")
            ce(f"v_add_u32 {v(wa[2])}, {32*48}, {v(wa[0])}")
            ce(f"v_cndmask_b32 {v(wa[0])}, {v(vT3)}, {v(wa[0])}, vcc")
            ce(f"v_cmp_le_u32 {s(sEX,2)}, 2, {v(vT)}")
            ce(f"s_xor_b64 {s(sEX,2)}, {s(sEX,2)}, vcc")
            ce(f"v_cndmask_b32 {v(wa[1])}, {v(vT3)}, {v(wa[1])}, {s(sEX,2)}")
            ce(f"v_cmp_gt_u32 {s(sEX,2)}, 4, {v(vT)}")
            ce(f"s_andn2_b64 {s(sEX,2)}, {s(sEX,2)}, vcc")
            ce(f"v_cndmask_b32 {v(wa[2])}, {v(vT3)}, {v(wa[2])}, {s(sEX,2)}")
            ce(f"v_mov_b32 {v(st8['wf'][1]+2)}, 0"); ce(f"v_mov_b32 {v(st8['wf'][1]+3)}, 0")
        A_(wphi_addr)
        for tt in range(2):
            for t in range(3):
                def rdw(t=t):
                    wf, wa = st8["wf"], st8["wa"]
                    for q in range(3):
                        ce(f"ds_read_b64_tr_b16 {v(wf[q//2] + 2*(q%2), 2)}, {v(wa[q])} offset:{8*t}", tag=("wf", q))
                A_(rdw)
                A_(lambda: None); A_(lambda: None); A_(lambda: None)
                def mmw(t=t, tt=tt):
                    wf, p = st8["wf"], st8["p"]
                    C.wait_lg([("wf", q) for q in range(3)])
                    ce(f"v_mfma_f32_16x16x32_bf16 {v(p[t],4)}, {v(wf[0],4)}, {v(QA[0][tt],4)}, 0")
                    ce(f"v_mfma_f32_16x16x32_bf16 {v(p[t],4)}, {v(wf[1],4)}, {v(QA[2][tt],4)}, {v(p[t],4)}")
                A_(mmw)
            for _ in range(4): A_(lambda: None)
            def X(f): A_(lambda: ce(f()))
            P = lambda q: v(st8["p"][q // 4] + q % 4); E = lambda q: v(st8["ep"][q]); M = lambda q: v(st8["m"][q])
            for op, mi in (("max", 0), ("min", 1)):
                X(lambda op=op, mi=mi: f"v_{op}3_f32 {M(mi)}, {P(0)}, {P(1)}, {P(2)}")
                for q in (3, 5, 7): X(lambda op=op, mi=mi, q=q: f"v_{op}3_f32 {M(mi)}, {M(mi)}, {P(q)}, {P(q+1)}")
            for mi in range(2): X(lambda mi=mi: f"v_mov_b32 {M(mi+2)}, {M(mi)}")
            for mi in range(2): X(lambda mi=mi: f"v_permlane16_swap_b32 {M(mi)}, {M(mi+2)}")
            X(lambda: f"v_max_f32 {M(0)}, {M(0)}, {M(2)}"); X(lambda: f"v_min_f32 {M(1)}, {M(1)}, {M(3)}")
            for q in range(9):
                X(lambda q=q: f"v_sub_f32 {E(q)}, {P(q)}, {M(0)}")
                X(lambda q=q: f"v_sub_f32 {P(q)}, {M(1)}, {P(q)}")
                X(lambda q=q: f"v_exp_f32 {E(q)}, {E(q)}")
                X(lambda q=q: f"v_exp_f32 {P(q)}, {P(q)}")
            X(lambda: f"v_add_f32 {M(0)}, {E(0)}, {E(1)}"); X(lambda: f"v_add_f32 {M(1)}, {P(0)}, {P(1)}")
            for q in range(2, 9):
                X(lambda q=q: f"v_add_f32 {M(0)}, {M(0)}, {E(q)}"); X(lambda q=q: f"v_add_f32 {M(1)}, {M(1)}, {P(q)}")
            for mi in range(2): X(lambda mi=mi: f"v_mov_b32 {M(mi+2)}, {M(mi)}")
            for mi in range(2): X(lambda mi=mi: f"v_permlane16_swap_b32 {M(mi)}, {M(mi+2)}")
            for mi in range(2): X(lambda mi=mi: f"v_add_f32 {M(mi)}, {M(mi)}, {M(mi+2)}")
            for mi in range(2): X(lambda mi=mi: f"v_rcp_f32 {M(mi)}, {M(mi)}")
            for q in range(9):
                X(lambda q=q: f"v_mul_f32 {E(q)}, {E(q)}, {M(0)}"); X(lambda q=q: f"v_mul_f32 {P(q)}, {P(q)}, {M(1)}")
            seq = [E(q) if False else ("E", q) for q in range(9)] + [("P", q) for q in range(9)]
            def rg(x): return E(x[1]) if x[0] == "E" else P(x[1])
            PHr = (lambda q, tt=tt: (QA[0][tt] + q if q < 4 else QA[2][tt] + q - 4 if q < 8 else st8["p9"] + (tt if c == 0 else 0)))
            PH = (lambda q, PHr=PHr: v(PHr(q)))
            for q in range(9): X(lambda q=q, PH=PH: f"v_cvt_pk_bf16_f32 {PH(q)}, {rg(seq[2*q])}, {rg(seq[2*q+1])}")
            if c == 1 and tt == 0: X(lambda: f"v_mov_b32 {v(st8['p9'] + 1)}, 0")
            if c == 1:
                def phw(tt=tt, PHr=PHr):
                    ce(f"s_mul_i32 {s(sT1)}, {s(sTG)}, {32*160}"); ce(f"s_add_u32 {s(sT1)}, {s(sT1)}, {PHK + tt*16*160}")
                    ce(f"v_mul_u32_u24 {v(vT3)}, 160, {v(vC)}"); ce(f"v_mad_u32_u24 {v(vT3)}, {v(vG)}, 40, {v(vT3)}")
                    ce(f"v_add_u32 {v(vT3)}, {s(sT1)}, {v(vT3)}")
                    for q in range(5): W(f"ds_write_b64 {v(vT3)}, {v(PHr(2*q), 2)} offset:{8*q}")
                A_(phw)
        def att_free2():
            for r_ in st8["wa"] + st8["ep"] + [st8["m"][3]]: C.release(r_)
            C.release4(st8["wf"]); C.release4(st8["p"])
            if c == 1:
                C.release4(QA[0]); C.release4(QA[2]); C.release(st8["p9"], 2)
        A_(att_free2)

        def silu_items(b):
            it = []
            tm = {}
            def al(): tm["t"] = [C.alloc() for _ in range(4)]
            it.append(al)
            for tt in range(2):
                for t in range(2):
                    def base(t=t, tt=tt): return Rc[("facc", b, t)][tt]
                    for q in range(4): it.append(lambda q=q, base=base, tt=tt: ce(f"v_mul_f32 {v(base()+q)}, {v(base()+q)}, {v(RLr+tt)}"))
                    for q in range(4): it.append(lambda q=q, base=base: ce(f"v_exp_f32 {v(tm['t'][q])}, -{v(base()+q)}"))
                    for q in range(4): it.append(lambda q=q: ce(f"v_add_f32 {v(tm['t'][q])}, 1.0, {v(tm['t'][q])}"))
                    for q in range(4): it.append(lambda q=q: ce(f"v_rcp_f32 {v(tm['t'][q])}, {v(tm['t'][q])}"))
                    for q in range(4): it.append(lambda q=q, base=base: ce(f"v_mul_f32 {v(base()+q)}, {v(base()+q)}, {v(tm['t'][q])}"))
                def pack(tt=tt):
                    d = Rc[("facc", b, 0)][tt]; s1 = Rc[("facc", b, 1)][tt]
                    ce(f"v_cvt_pk_bf16_f32 {v(d)}, {v(d)}, {v(d+1)}"); ce(f"v_cvt_pk_bf16_f32 {v(d+1)}, {v(d+2)}, {v(d+3)}")
                    ce(f"v_cvt_pk_bf16_f32 {v(d+2)}, {v(s1)}, {v(s1+1)}"); ce(f"v_cvt_pk_bf16_f32 {v(d+3)}, {v(s1+2)}, {v(s1+3)}")
                it.append(pack)
            def fin():
                Rc[("h", b)] = Rc[("facc", b, 0)]
                C.release4(Rc[("facc", b, 1)])
                for r_ in tm["t"]: C.release(r_)
            it.append(fin)
            return it
        def facc_alloc(b):
            for t in range(2): Rc[("facc", b, t)] = C.alloc4(2)
        def split(l, n):
            k = (len(l) + n - 1) // n
            return [l[i * k:(i + 1) * k] for i in range(n)]

        kvj = []
        if c == 1:
            kq = {}
            def kv0():
                kq["a"] = C.alloc(2); kq["acc"] = C.alloc4(3); kq["bf"] = C.alloc(4, 4); kq["af"] = C.alloc4(3)
                ce(f"v_lshl_add_u32 {v(vT)}, {v(vG)}, 2, {v(vRP)}")
                ce(f"s_lshr_b32 {s(sT1)}, {s(sTG)}, 1")
                ce(f"s_mul_i32 {s(sT2)}, {s(sT1)}, 80"); ce(f"s_add_u32 {s(sT2)}, {s(sT2)}, {PHK}")
                ce(f"v_mul_u32_u24 {v(vT2)}, 160, {v(vT)}"); ce(f"v_lshl_add_u32 {v(vT2)}, {v(vCP)}, 3, {v(vT2)}")
                ce(f"v_add_u32 {v(kq['a'])}, {s(sT2)}, {v(vT2)}")
                ce(f"s_lshl_b32 {s(sT2)}, {s(sT1)}, 2")
                ce(f"v_add_u32 {v(vT2)}, {s(sT2)}, {v(vCP)}")
                ce(f"s_add_u32 {s(sT2)}, {s(sT2)}, 4")
                ce(f"v_mov_b32 {v(vT3)}, {s(sT2)}")
                ce(f"v_cmp_eq_u32 vcc, 0, {v(vCP)}")
                ce(f"v_cndmask_b32 {v(vT3)}, 9, {v(vT3)}, vcc")
                ce(f"s_and_b32 {s(sT3)}, {s(sTG)}, 1"); ce(f"s_cmp_eq_u32 {s(sT3)}, 1"); ce(f"s_cselect_b64 vcc, -1, 0")
                ce(f"v_cndmask_b32 {v(vT2)}, {v(vT2)}, {v(vT3)}, vcc")
                ce(f"v_mul_u32_u24 {v(vT)}, 96, {v(vT)}"); ce(f"v_lshl_add_u32 {v(vT)}, {v(vT2)}, 3, {v(vT)}")
                ce(f"v_add_u32 {v(kq['a']+1)}, {VV}, {v(vT)}")
            kvj.append(kv0)
            for ks in range(4):
                def rd(ks=ks):
                    for hf in range(2):
                        ce(f"ds_read_b64_tr_b16 {v(kq['bf']+2*hf,2)}, {v(kq['a']+1)} offset:{(32*ks+16*hf)*96}", tag=("kv", 0))
                    for T in range(3):
                        for hf in range(2):
                            ce(f"ds_read_b64_tr_b16 {v(kq['af'][T]+2*hf,2)}, {v(kq['a'])} offset:{(32*ks+16*hf)*160 + 32*T}", tag=("kv", 0))
                kvj.append(rd)
                def mm(ks=ks):
                    C.wait_lg(("kv", 0))
                    for T in range(3):
                        d = kq["acc"][T]
                        ce(f"v_mfma_f32_16x16x32_bf16 {v(d,4)}, {v(kq['af'][T],4)}, {v(kq['bf'],4)}, {'0' if ks == 0 else v(d,4)}")
                kvj.append(mm)
            def kvst():
                ce(f"s_and_b32 {s(sT3)}, {s(sTG)}, 1"); ce(f"s_lshl_b32 {s(sT3)}, {s(sT3)}, 4")
                ce(f"v_add_u32 {v(vT)}, {s(sT3)}, {v(vC)}")
                ce(f"v_mul_u32_u24 {v(vT2)}, 160, {v(vT)}"); ce(f"v_lshl_add_u32 {v(vT2)}, {v(vG)}, 4, {v(vT2)}")
                ce(f"v_mov_b32 {v(vT3)}, {OOB}")
                ce(f"v_cmp_gt_u32 vcc, 21, {v(vT)}")
                ce(f"v_cndmask_b32 {v(kq['a'])}, {v(vT3)}, {v(vT2)}, vcc")
                ce(f"v_cmp_gt_u32 vcc, 2, {v(vG)}")
                ce(f"v_cndmask_b32 {v(kq['a']+1)}, {v(vT3)}, {v(kq['a'])}, vcc")
                ce(f"s_lshl_b32 {s(sT1)}, {s(sJ)}, 4"); ce(f"s_add_u32 {s(sT1)}, {s(sT1)}, {s(sI)}"); ce(f"s_mul_i32 {s(sT1)}, {s(sT1)}, {KVP_STRIDE}")
                ce(f"s_lshr_b32 {s(sT2)}, {s(sTG)}, 1"); ce(f"s_mul_i32 {s(sT2)}, {s(sT2)}, {21*160}")
                ce(f"s_add_u32 {s(sT1)}, {s(sT1)}, {s(sT2)}"); ce(f"s_add_u32 {s(sT1)}, {s(sT1)}, {WS_KVP}")
                for T in range(3):
                    ce(f"buffer_store_dwordx4 {v(kq['acc'][T],4)}, {v(kq['a'] + (1 if T == 2 else 0))}, {s(S_WS,4)}, {s(sT1)} offen offset:{64*T} sc1", tag=("kvst",))
                ce("s_nop 1")
                C.release(kq["a"], 2); C.release4(kq["acc"]); C.release(kq["bf"], 4); C.release4(kq["af"])
            kvj.append(lambda: None); kvj.append(kvst)
        def kv_signal():
            ce(f"s_cmp_lg_u32 {s(sTG)}, 0"); ce("s_cbranch_scc1 L_k1_nosig")
            C.raw(f"    s_mov_b64 exec, 1")
            C.raw(f"    v_mov_b32 {v(vT)}, 1")
            C.raw(f"    s_lshl_b32 {s(sT1)}, {s(sJ)}, 2")
            C.raw(f"    v_mov_b32 {v(vT2)}, {s(sT1)}")
            C.raw(f"    buffer_atomic_add {v(vT)}, {v(vT2)}, {s(S_DBG,4)}, 0 offen")
            C.raw(f"    s_mov_b64 exec, -1")
            C.label("L_k1_nosig")

        a3 = split(att, 3)
        for b in range(4):
            facc_alloc(b)
            if b == 0: sides = a3
            else: sides = split(silu_items(b - 1), 3)
            for q in range(3):
                ep = 7 + 3 * b + q
                sd = list(sides[q])
                pre = []
                post = []
                if c == 1 and ep == 10: sd = merge(sd, kvj)
                if c == 1 and ep == 11: post = [lambda: C.wait_vm(("kvst",))]
                if c == 1 and ep == 12: pre = [kv_signal]
                run_epoch(ep, sd, pre=pre, post=post)
        cstamp()
        vS = C.alloc()
        def scr_addr():
            ce(f"s_lshl_b32 {s(sT1)}, {s(sTG)}, 12"); ce(f"s_add_u32 {s(sT1)}, {s(sT1)}, {SCR}")
            ce(f"v_add_u32 {v(vS)}, {s(sT1)}, {v(vL16)}")
        def xfree():
            pass
        if c == 0:
            xfree()
            oj = {}
            def o_poll_issue():
                oj["f"] = C.alloc()
                ce(f"s_lshl_b32 {s(sT1)}, {s(sJ)}, 2"); ce(f"v_mov_b32 {v(vT)}, {s(sT1)}")
                ce(f"buffer_load_dword {v(oj['f'])}, {v(vT)}, {s(S_DBG,4)}, 0 offen sc1", tag=("poll",))
            def o_poll_check():
                C.wait_vm(("poll",))
                f = oj["f"]
                ce(f"s_mov_b32 {s(sT3)}, 0")
                C.label("L_k1_poll")
                C.raw(f"    v_readfirstlane_b32 {s(sT1)}, {v(f)}")
                C.raw(f"    s_nop 1")
                C.raw(f"    s_cmp_ge_u32 {s(sT1)}, 16")
                C.raw(f"    s_cbranch_scc1 L_k1_pollok")
                C.raw(f"    s_add_u32 {s(sT3)}, {s(sT3)}, 1")
                C.raw(f"    s_cmp_ge_u32 {s(sT3)}, 0x8000")
                C.raw(f"    s_cbranch_scc1 L_k1_pollok")
                C.raw(f"    s_sleep 8")
                C.raw(f"    s_lshl_b32 {s(sT1)}, {s(sJ)}, 2")
                C.raw(f"    v_mov_b32 {v(vT)}, {s(sT1)}")
                C.raw(f"    buffer_load_dword {v(f)}, {v(vT)}, {s(S_DBG,4)}, 0 offen sc1")
                C.raw(f"    s_waitcnt vmcnt(0)")
                C.raw(f"    s_branch L_k1_poll")
                C.label("L_k1_pollok")
                C.release(f)
                oj["k"] = {}; oj["a"] = C.alloc(2)
                ce(f"v_lshlrev_b32 {v(oj['a'])}, 4, v0")
                ce(f"v_add_u32 {v(vT)}, 4096, {v(oj['a'])}"); ce(f"v_mov_b32 {v(vT3)}, {OOB}")
                ce(f"v_cmp_gt_u32 vcc, 164, v0")
                ce(f"v_cndmask_b32 {v(oj['a']+1)}, {v(vT3)}, {v(vT)}, vcc")
                ce(f"s_mul_i32 {s(sT2)}, {s(sJ)}, {16*KVP_STRIDE}"); ce(f"s_add_u32 {s(sT2)}, {s(sT2)}, {WS_KVP}")
            def o_load(ii, hh):
                if hh == 0 and ii: ce(f"s_add_u32 {s(sT2)}, {s(sT2)}, {KVP_STRIDE}")
                oj["k"][ii*2+hh] = C.alloc(4, 4)
                ce(f"buffer_load_dwordx4 {v(oj['k'][ii*2+hh], 4)}, {v(oj['a']+hh)}, {s(S_WS,4)}, {s(sT2)} offen sc1", tag=("kvl", ii, hh))
            o1 = [o_poll_check] + [lambda ii=ii, hh=hh: o_load(ii, hh) for ii in range(16) for hh in range(2)]
            o2 = []
            for ii in range(1, 16):
                for hh in range(2):
                    def ad(ii=ii, hh=hh):
                        C.wait_vm([("kvl", ii, hh), ("kvl", 0, hh)])
                        for q in range(4): ce(f"v_add_f32 {v(oj['k'][hh]+q)}, {v(oj['k'][hh]+q)}, {v(oj['k'][ii*2+hh]+q)}")
                        C.release(oj["k"][ii*2+hh], 4)
                    o2.append(ad)
            def o_kvb():
                for hh in range(2):
                    k = oj["k"][hh]
                    ce(f"v_cvt_pk_bf16_f32 {v(k)}, {v(k)}, {v(k+1)}"); ce(f"v_cvt_pk_bf16_f32 {v(k+1)}, {v(k+2)}, {v(k+3)}")
                    ce(f"v_add_u32 {v(vT)}, {256*hh}, v0")
                    ce(f"v_mul_u32_u24 {v(vT2)}, 205, {v(vT)}"); ce(f"v_lshrrev_b32 {v(vT2)}, 10, {v(vT2)}")
                    ce(f"v_add_u32 {v(vT)}, {v(vT)}, {v(vT2)}")
                    ce(f"v_lshlrev_b32 {v(vT)}, 3, {v(vT)}"); ce(f"v_add_u32 {v(vT)}, {KVB}, {v(vT)}")
                    if hh:
                        ce(f"v_mov_b32 {v(vT3)}, {MISC + 8000}"); ce(f"v_cmp_gt_u32 vcc, 164, v0")
                        ce(f"v_cndmask_b32 {v(vT)}, {v(vT3)}, {v(vT)}, vcc")
                    W(f"ds_write_b64 {v(vT)}, {v(k,2)}")
                C.release4([oj["k"][0], oj["k"][1]]); C.release(oj["a"], 2)
            o2.append(o_kvb)
            o3 = []
            def o_addr():
                oj["a"] = C.alloc(4, 4); oj["af"] = C.alloc4(9); oj["n"] = C.alloc4(6); oj["f2"] = C.alloc4(2)
                for tt in range(2):
                    ce(f"v_mov_b32 {v(oj['f2'][tt])}, {v(st8['p9'] + tt)}")
                    for q in range(1, 4): ce(f"v_mov_b32 {v(oj['f2'][tt] + q)}, 0")
                ce(f"v_lshrrev_b32 {v(vT)}, 1, {v(vRP)}")
                ce(f"v_and_b32 {v(vT2)}, 1, {v(vRP)}"); ce(f"v_mul_u32_u24 {v(vT2)}, 9, {v(vT2)}")
                ce(f"v_mad_u32_u24 {v(vT2)}, {v(vT)}, 23, {v(vT2)}")
                ce(f"v_add_u32 {v(vT2)}, {v(vT2)}, {v(vCP)}")
                ce(f"v_and_b32 {v(vT3)}, 1, {v(vG)}"); ce(f"v_mul_u32_u24 {v(vT3)}, 48, {v(vT3)}"); ce(f"v_add_u32 {v(vT3)}, {KVB}, {v(vT3)}")
                a = oj["a"]
                ce(f"v_mul_u32_u24 {v(a)}, 96, {v(vT2)}"); ce(f"v_add_u32 {v(a)}, {v(a)}, {v(vT3)}")
                ce(f"v_add_u32 {v(a+1)}, {4*96}, {v(a)}")
                ce(f"v_add_u32 {v(a+2)}, {8*96}, {v(a)}")
                ce(f"v_mul_u32_u24 {v(vT2)}, {21*96}, {v(vT)}"); ce(f"v_add3_u32 {v(vT2)}, {v(vT2)}, {v(vT3)}, 0"); ce(f"v_add_u32 {v(vT2)}, {20*96}, {v(vT2)}")
                ce(f"v_cmp_eq_u32 vcc, 0, {v(vCP)}")
                ce(f"v_cndmask_b32 {v(a+2)}, {v(vT2)}, {v(a+2)}, vcc")
                ce(f"v_lshrrev_b32 {v(vT2)}, 1, {v(vG)}")
                ce(f"v_cmp_eq_u32 vcc, {v(vT)}, {v(vT2)}")
                ce(f"v_mov_b32 {v(vT3)}, {ZERO}")
                for t in range(3): ce(f"v_cndmask_b32 {v(a+t)}, {v(vT3)}, {v(a+t)}, vcc")
                for t in range(3):
                    for u in range(3):
                        ce(f"ds_read_b128 {v(oj['af'][t*3+u], 4)}, {v(a+t)} offset:{16*u}", tag=("of", t))
            o3.append(o_addr)
            o3.append(lambda: None)
            for t in range(3):
                def om(t=t):
                    C.wait_lg(("of", t))
                    for u in range(3):
                        for tt in range(2):
                            d = oj["n"][3 * tt + t]; bq = (QA[0][tt], QA[2][tt], oj["f2"][tt])[u]
                            ce(f"v_mfma_f32_16x16x32_bf16 {v(d,4)}, {v(oj['af'][t*3+u],4)}, {v(bq,4)}, {'0' if u == 0 else v(d,4)}")
                o3.append(om)
            o4 = []
            for tt in range(2):
                n_ = lambda q, tt=tt: v(oj["n"][3 * tt + q // 4] + q % 4)
                o4.append(lambda n_=n_: ce(f"v_add_f32 {n_(9)}, 0x358637bd, {n_(9)}"))
                o4.append(lambda n_=n_: ce(f"v_rcp_f32 {n_(9)}, {n_(9)}"))
                for q in range(9): o4.append(lambda n_=n_, q=q: ce(f"v_mul_f32 {n_(q)}, {n_(q)}, {n_(9)}"))
                for q in range(5): o4.append(lambda n_=n_, q=q: ce(f"v_cvt_pk_bf16_f32 {n_(q)}, {n_(2*q)}, {n_(2*q+1)}"))
                def ost(tt=tt):
                    ce(f"s_lshl_b32 {s(sT1)}, {s(sI)}, 2"); ce(f"s_add_u32 {s(sT1)}, {s(sT1)}, {s(sTG)}"); ce(f"s_mul_i32 {s(sT1)}, {s(sT1)}, {36*1024}")
                    ce(f"s_add_u32 {s(sT1)}, {s(sT1)}, {WS_O + tt*1024}")
                    ce(f"s_lshl_b32 {s(sT2)}, {s(sJ)}, 11"); ce(f"s_add_u32 {s(sT2)}, {s(sT2)}, {s(sT1)}")
                    ce(f"buffer_store_dwordx4 {v(oj['n'][3*tt],4)}, {v(vL16)}, {s(S_WS,4)}, {s(sT2)} offen")
                    ce(f"s_lshr_b32 {s(sT2)}, {s(sJ)}, 3"); ce(f"s_add_u32 {s(sT2)}, {s(sT2)}, 16"); ce(f"s_lshl_b32 {s(sT2)}, {s(sT2)}, 11")
                    ce(f"s_and_b32 {s(sT3)}, {s(sJ)}, 7"); ce(f"s_lshl_b32 {s(sT3)}, {s(sT3)}, 1")
                    ce(f"s_add_u32 {s(sT2)}, {s(sT2)}, {s(sT3)}"); ce(f"s_add_u32 {s(sT2)}, {s(sT2)}, {s(sT1)}")
                    ce(f"buffer_store_short {v(oj['n'][3*tt+1])}, {v(vL16)}, {s(S_WS,4)}, {s(sT2)} offen")
                o4.append(ost)
            extra = {2: [o_poll_issue], 4: o1[:11], 5: o1[11:21], 6: merge(o2[:6], o1[21:27]), 7: merge(o2[6:12], o1[27:]), 8: o2[12:21], 9: o2[21:], 10: o3, 11: o4[:17], 12: o4[17:]}
            scr_addr()
            for h in range(19):
                ep = EH + h
                sd = []
                pre = []
                if h < 18:
                    for t in range(2): Rc[("pacc", h, t)] = C.alloc4(2)
                if h == 0:
                    pre = silu_items(3)[:]
                if h >= 1:
                    def wr(q, h=h):
                        t, tt = divmod(q, 2)
                        W(f"ds_write_b128 {v(vS)}, {v(Rc[('pacc', h-1, t)][tt], 4)} offset:{((h-1)&1)*16384 + q*1024}")
                        if tt == 1: C.release4(Rc[("pacc", h - 1, t)])
                    sd = [lambda: None] + [lambda q=q, wr=wr: wr(q) for q in range(4)]
                sd = merge(sd, extra.get(h, []))
                run_epoch(ep, sd, pre=pre)
            cstamp()
        else:
            facc_alloc(4)
            scr_addr()
            s3 = split(silu_items(3), 3)
            def cread(h):
                it = []
                def al():
                    for t in range(2): Rc[("pacc", h, t)] = C.alloc4(2)
                it.append(al)
                for q in range(4):
                    t, tt = divmod(q, 2)
                    it.append(lambda q=q, t=t, tt=tt: ce(f"ds_read_b128 {v(Rc[('pacc', h, t)][tt], 4)}, {v(vS)} offset:{(h&1)*16384 + q*1024}", tag=("c", h)))
                return it
            def pstore(h):
                it = []
                for t in range(2):
                    def f(t=t):
                        dd = Rc[("pacc", h, t)]; d = dd[0]
                        for q in range(4): ce(f"v_cvt_pk_bf16_f32 {v(d+q)}, {v(dd[q//2]+2*(q%2))}, {v(dd[q//2]+2*(q%2)+1)}")
                        ce(f"s_add_u32 {s(sT1)}, {s(sPART)}, {(2*h+t)*1024}")
                        ce(f"buffer_store_dwordx4 {v(d,4)}, {v(vL16)}, {s(S_WS,4)}, {s(sT1)} offen {st_policy}")
                        C.release4(dd)
                    it.append(f)
                return it
            for q in range(3):
                sd = list(s3[q])
                if q == 2: sd = sd + cread(0)
                run_epoch(EH + q, sd)
            xfree()
            for h in range(19):
                ep = EH + 3 + h
                pre = []
                sd = []
                if h == 0: pre = silu_items(4)
                if h >= 1: sd = [lambda: None] + pstore(h - 1)
                if h + 1 < 18: sd = sd + cread(h + 1)
                run_epoch(ep, sd, pre=pre)
            cstamp()
        if stamps:
            ce("s_waitcnt lgkmcnt(0)")
            ce(f"s_cmp_lg_u32 {s(sTG)}, 0"); ce("s_cbranch_scc1 L_k1_end")
            ce(f"s_lshl_b32 {s(sT1)}, s2, 1"); ce(f"s_add_u32 {s(sT1)}, {s(sT1)}, {c}"); ce(f"s_lshl_b32 {s(sT1)}, {s(sT1)}, 6"); ce(f"s_add_u32 {s(sT1)}, {s(sT1)}, {WS_DBG + 0x100000}")
            ce("s_mov_b64 exec, 1")
            ce("v_mov_b32 v0, 0")
            for k_ in range(nst_c):
                ce(f"v_mov_b32 v2, {s(sST+2*k_)}"); ce(f"v_mov_b32 v3, {s(sST+2*k_+1)}")
                ce(f"buffer_store_dwordx2 v[2:3], v0, {s(S_WS,4)}, {s(sT1)} offen offset:{8*k_}")
        ce("s_endpgm")
        out_streams.append(C)
        print(f"class {c}: instrs {C.ninstr} maxv {C.maxv}")
    lines = kernel_header(name) + S.lines + out_streams[0].lines + out_streams[1].lines + ["L_k1_end:", "    s_endpgm"]
    return lines

def merge(a, b):
    out = []; i = j = 0
    while i < len(a) or j < len(b):
        if j >= len(b) or (i < len(a) and i * len(b) <= j * len(a)): out.append(a[i]); i += 1
        else: out.append(b[j]); j += 1
    return out

def dump_regs(C, regs, vL, vT):
    ce = C.e
    ce("s_nop 7"); ce("s_nop 7")
    C.wait_lg_all()
    ce(f"s_lshl_b32 {s(sT1)}, s2, 3"); ce(f"s_add_u32 {s(sT1)}, {s(sT1)}, {s(sWV)}"); ce(f"s_lshl_b32 {s(sT1)}, {s(sT1)}, 14"); ce(f"s_add_u32 {s(sT1)}, {s(sT1)}, {WS_DBG + 0x200000}")
    ce(f"v_lshlrev_b32 {v(vT)}, 2, {v(vL)}")
    for k, r in enumerate(regs):
        if k and k % 16 == 0: ce(f"s_add_u32 {s(sT1)}, {s(sT1)}, 4096")
        ce(f"buffer_store_dword {v(r)}, {v(vT)}, {s(S_WS,4)}, {s(sT1)} offen offset:{(k%16)*256}")
```

```python
from asmlib import *
from k1 import WS_PART, WS_O, WS_WOT, WS_DBG

K2_LDS = 36 * 1024
def gen_k2(name, opts):
    stamps = opts.get("stamps", 0)
    NP = 16
    S = Stream(nv=168, reserved=[0])
    e = S.e
    S_X, S_OUT, S_WS = 8, 12, 16
    sT, sMU, sWV, sTAU, s0, s1, s2_, sLO, sHI = 20, 21, 22, 23, 24, 25, 26, 27, 28
    e("s_cmp_ge_u32 s2, 256"); e("s_cbranch_scc1 L_k2_end")
    if stamps: e("s_memrealtime s[40:41]")
    e("s_load_dwordx2 s[8:9], s[0:1], 0")
    e("s_load_dwordx2 s[12:13], s[0:1], 56")
    e("s_load_dwordx2 s[16:17], s[0:1], 72")
    vL = S.alloc(); vL16 = S.alloc(); vT = S.alloc(); vXA = S.alloc()
    e(f"v_and_b32 {v(vL)}, 63, v0"); e(f"v_lshrrev_b32 {v(vT)}, 6, v0")
    e(f"v_readfirstlane_b32 {s(sWV)}, {v(vT)}")
    e(f"v_lshlrev_b32 {v(vL16)}, 4, {v(vL)}")
    e(f"s_and_b32 {s(sT)}, s2, 7"); e(f"s_lshr_b32 {s(s0)}, s2, 5"); e(f"s_lshl_b32 {s(s0)}, {s(s0)}, 3"); e(f"s_add_u32 {s(sT)}, {s(sT)}, {s(s0)}")
    e(f"s_bfe_u32 {s(sMU)}, s2, 0x20003")
    e(f"s_mul_i32 {s(sTAU)}, {s(sMU)}, 9"); e(f"s_add_u32 {s(sTAU)}, {s(sTAU)}, {s(sWV)}")
    e(f"s_mov_b32 s10, {2048*1152}"); e("s_mov_b32 s11, 0x20000")
    e(f"s_mov_b32 s14, {2048*1152}"); e("s_mov_b32 s15, 0x20000")
    e(f"s_mov_b32 s18, 0x10000000"); e("s_mov_b32 s19, 0x20000")
    e(f"s_mov_b32 {s(sLO)}, 0x00003f80"); e(f"s_mov_b32 {s(sHI)}, 0x3f800000")
    e(f"v_and_b32 {v(vT)}, 15, {v(vL)}"); e(f"v_mul_u32_u24 {v(vXA)}, 1152, {v(vT)}")
    e(f"v_lshrrev_b32 {v(vT)}, 4, {v(vL)}"); e(f"v_lshl_add_u32 {v(vXA)}, {v(vT)}, 3, {v(vXA)}")
    e(f"s_mul_i32 {s(s0)}, {s(sT)}, {36*1024}"); e(f"s_lshl_b32 {s(s1)}, {s(sWV)}, 12"); e(f"s_add_u32 {s(s0)}, {s(s0)}, {s(s1)}"); e(f"s_add_u32 {s(s0)}, {s(s0)}, {WS_O}")
    e(f"s_mov_b32 m0, {s(s1)}")
    e("s_waitcnt lgkmcnt(0)")
    ot = []
    for q in range(4):
        ot.append(e(f"buffer_load_dwordx4 {v(vL16)}, {s(S_WS,4)}, {s(s0)} offen offset:{q*1024} lds"))
    WA = S.alloc(72, 4)
    e(f"s_mul_i32 {s(s0)}, {s(sTAU)}, {18*1024}"); e(f"s_add_u32 {s(s0)}, {s(s0)}, {WS_WOT}")
    wt = []
    for u in range(18):
        if u and u % 4 == 0: e(f"s_add_u32 {s(s0)}, {s(s0)}, 4096")
        wt.append(e(f"buffer_load_dwordx4 {v(WA+4*u,4)}, {v(vL16)}, {s(S_WS,4)}, {s(s0)} offen offset:{(u%4)*1024}"))
    NB = 11
    PR = S.alloc(4 * NB, 4)
    e(f"s_mul_i32 {s(s1)}, {s(sT)}, 36"); e(f"s_add_u32 {s(s1)}, {s(s1)}, {s(sTAU)}"); e(f"s_lshl_b32 {s(s1)}, {s(s1)}, 10")
    pt = {}
    def pload(j):
        if j: e(f"s_add_u32 {s(s1)}, {s(s1)}, {64*36*1024}")
        pt[j] = e(f"buffer_load_dwordx4 {v(PR+4*(j%NB),4)}, {v(vL16)}, {s(S_WS,4)}, {s(s1)} offen")
    for j in range(NB): pload(j)
    XR = S.alloc(4, 2)
    e(f"s_mul_i32 {s(s2_)}, {s(sT)}, {32*1152}"); e(f"s_lshl_b32 {s(s0)}, {s(sTAU)}, 5"); e(f"s_add_u32 {s(s2_)}, {s(s2_)}, {s(s0)}")
    e(f"s_add_u32 {s(s0)}, {s(s2_)}, {16*1152}")
    xt = [e(f"buffer_load_dwordx2 {v(XR,2)}, {v(vXA)}, {s(S_X,4)}, {s(s2_)} offen"),
          e(f"buffer_load_dwordx2 {v(XR+2,2)}, {v(vXA)}, {s(S_X,4)}, {s(s0)} offen")]
    S.wait_vm(ot)
    e("s_barrier")
    ACC = S.alloc(8, 4); Y = S.alloc(8, 4); BR = S.alloc(24, 4)
    def brd(u):
        for tt in range(2):
            e(f"ds_read_b128 {v(BR + (u%3)*8 + 4*tt, 4)}, {v(vL16)} offset:{u*2048 + tt*1024}", tag=("b", u))
    brd(0); brd(1)
    for u in range(18):
        if u + 2 < 18: brd(u + 2)
        S.wait_vm(wt[u]); S.wait_lg(("b", u))
        for tt in range(2):
            d = ACC + 4 * tt
            e(f"v_mfma_f32_16x16x32_bf16 {v(d,4)}, {v(WA+4*u,4)}, {v(BR+(u%3)*8+4*tt,4)}, {'0' if u == 0 else v(d,4)}")
    for j in range(NP):
        S.wait_vm(pt[j])
        for q in range(4):
            r = PR + 4 * (j % NB) + q
            for hf in range(2):
                y = Y + 2 * q + hf
                e(f"v_dot2_f32_bf16 {v(y)}, {v(r)}, {s(sHI if hf else sLO)}, {'0' if j == 0 else v(y)}")
        if j + NB < NP: pload(j + NB)
    T = BR
    for q in range(8): e(f"v_exp_f32 {v(T+q)}, -{v(Y+q)}")
    for q in range(8): e(f"v_add_f32 {v(T+q)}, 1.0, {v(T+q)}")
    for q in range(8): e(f"v_rcp_f32 {v(T+q)}, {v(T+q)}")
    for q in range(8): e(f"v_mul_f32 {v(Y+q)}, {v(Y+q)}, {v(ACC+q)}")
    for q in range(8): e(f"v_mul_f32 {v(T+q)}, 0x3ef5fdf0, {v(T+q)}")
    S.wait_vm(xt)
    for q in range(4):
        e(f"v_lshlrev_b32 {v(ACC+2*q)}, 16, {v(XR+q)}")
        e(f"v_and_b32 {v(ACC+2*q+1)}, 0xffff0000, {v(XR+q)}")
    for q in range(8): e(f"v_fma_f32 {v(Y+q)}, {v(Y+q)}, {v(T+q)}, {v(ACC+q)}")
    for q in range(4): e(f"v_cvt_pk_bf16_f32 {v(XR+q)}, {v(Y+2*q)}, {v(Y+2*q+1)}")
    e(f"buffer_store_dwordx2 {v(XR,2)}, {v(vXA)}, {s(S_OUT,4)}, {s(s2_)} offen")
    e(f"buffer_store_dwordx2 {v(XR+2,2)}, {v(vXA)}, {s(S_OUT,4)}, {s(s0)} offen")
    if stamps:
        e("s_waitcnt vmcnt(0)")
        e("s_memrealtime s[42:43]")
        e("s_waitcnt lgkmcnt(0)")
        e(f"s_cmp_lg_u32 {s(sWV)}, 0"); e("s_cbranch_scc1 L_k2_end")
        e(f"s_lshl_b32 {s(s0)}, s2, 4"); e(f"s_add_u32 {s(s0)}, {s(s0)}, {WS_DBG + 0x180000}")
        e("s_mov_b64 exec, 1"); e("v_mov_b32 v0, 0")
        for q in range(4): e(f"v_mov_b32 v{4+q}, s{40+q}")
        e(f"buffer_store_dwordx4 v[4:7], v0, {s(S_WS,4)}, {s(s0)} offen")
    print("k2 instrs", S.ninstr, "maxv", S.maxv)
    return kernel_header(name) + S.lines + ["L_k2_end:", "    s_endpgm"], S.maxv
```

```python
import sys, json
from asmlib import *
import k1, k2
def build(path, opts):
    L = []
    L.append(f"; @launch kernel=hh_k1_kernel grid=(256,1,1) block=(512,1,1) lds={k1.LDS_BYTES}")
    if not opts.get("only_k1"):
        L.append(f"; @launch kernel=hh_k2_kernel grid=(256,1,1) block=(576,1,1) lds={k2.K2_LDS}")
    L.append('.amdgcn_target "amdgcn-amd-amdhsa--gfx950"')
    L += k1.gen_k1("hh_k1_kernel", opts)
    l2, mv = k2.gen_k2("hh_k2_kernel", opts)
    L += l2
    L += kernel_desc("hh_k1_kernel", 256, 102)
    L += kernel_desc("hh_k2_kernel", 168, 48)
    open(path, "w").write("\n".join(L) + "\n")
if __name__ == "__main__":
    opts = {}
    for a in sys.argv[2:]:
        k, val = a.split("=")
        try: val = int(val)
        except ValueError: pass
        opts[k] = val
    build(sys.argv[1], opts)
```
